```python
import torch

def _softmax(x, axis=-1):
    return torch.softmax(x, dim=axis)

def _gelu(x):
    return torch.nn.functional.gelu(x, approximate='tanh')

def _silu(x):
    return torch.nn.functional.silu(x)

def _sigmoid(x):
    return torch.sigmoid(x)

def _layernorm(x, axis=-1, eps=1e-05):
    m = x.mean(dim=axis, keepdim=True)
    v = x.var(dim=axis, keepdim=True, unbiased=False)
    return (x - m) / torch.sqrt(v + eps)

def _scatter_add(tgt, idx, src, axis=0):
    return tgt.clone().index_add_(axis, idx, src)

def _segment_sum(src, seg, n):
    out = torch.zeros((n,) + src.shape[1:], dtype=src.dtype)
    return out.index_add_(0, seg, src)

def _pad(x, pw):
    flat = tuple((v for pair in reversed(pw) for v in pair))
    return torch.nn.functional.pad(x, flat)
kernel_name = 'gated_mix__memory_aug_recurrent_mem_tr__ssm_conv_s4__prompt'

def setup_inputs():

    _w = lambda a: (lambda t: t.to(torch.bfloat16) if t.is_floating_point() else t)(torch.as_tensor(a))

    def _A_setup():
        B, S, Dm = (1, 2048, 640)
        H, Dh = (32, 128)
        M, seg = (8, 32)
        seg = min(seg, S)
        S = S // seg * seg
        return {'x': _w((lambda *s: torch.randn(*s, dtype=torch.bfloat16) * 0.05)(B, S, Dm)), 'mem0': _w((lambda *s: torch.randn(*s, dtype=torch.bfloat16) * 0.4)(B, M, Dm)), 'Wq': _w((lambda *s: torch.randn(*s, dtype=torch.bfloat16) * 6.4)(Dm, H, Dh) * Dm ** (-0.5)), 'Wk': _w((lambda *s: torch.randn(*s, dtype=torch.bfloat16) * 6.4)(Dm, H, Dh) * Dm ** (-0.5)), 'Wv': _w((lambda *s: torch.randn(*s, dtype=torch.bfloat16) * 0.4)(Dm, H, Dh) * Dm ** (-0.5)), 'Wo': _w((lambda *s: torch.randn(*s, dtype=torch.bfloat16) * 0.4)(H, Dh, Dm) * (H * Dh) ** (-0.5)), 'seg_len': seg}
    _A_in = _A_setup()

    def _B_setup():
        B, L, D, N = (1, 2048, 640, 128)
        A_re = -(lambda _x: torch.exp(torch.as_tensor(_x)))((lambda *s: torch.randn(*s, dtype=torch.bfloat16) * 6.4)(D, N))
        A_im = torch.pi * (lambda *s: torch.randn(*s, dtype=torch.bfloat16) * 0.05)(D, N)
        B_re = (lambda *s: torch.randn(*s, dtype=torch.bfloat16) * 0.1)(D, N)
        B_im = (lambda *s: torch.randn(*s, dtype=torch.bfloat16) * 0.1)(D, N)
        C_re = (lambda *s: torch.randn(*s, dtype=torch.bfloat16) * 0.1)(D, N)
        C_im = (lambda *s: torch.randn(*s, dtype=torch.bfloat16) * 0.1)(D, N)
        log_dt = (lambda *s: torch.randn(*s, dtype=torch.bfloat16) * 0.05)(D) * 0.5 - 4.0
        Dskip = (lambda *s: torch.randn(*s, dtype=torch.bfloat16) * 0.05)(D)
        return {'u': _w((lambda *s: torch.randn(*s, dtype=torch.bfloat16) * 0.05)(B, L, D)), 'A_re': _w(A_re), 'A_im': _w(A_im), 'B_re': _w(B_re), 'B_im': _w(B_im), 'C_re': _w(C_re), 'C_im': _w(C_im), 'log_dt': _w(log_dt), 'Dskip': _w(Dskip)}
    _B_in = _B_setup()
    return {'A_x': _A_in['x'], 'A_mem0': _A_in['mem0'], 'A_Wq': _A_in['Wq'], 'A_Wk': _A_in['Wk'], 'A_Wv': _A_in['Wv'], 'A_Wo': _A_in['Wo'], 'A_seg_len': _A_in['seg_len'], 'B_u': _B_in['u'], 'B_A_re': _B_in['A_re'], 'B_A_im': _B_in['A_im'], 'B_B_re': _B_in['B_re'], 'B_B_im': _B_in['B_im'], 'B_C_re': _B_in['C_re'], 'B_C_im': _B_in['C_im'], 'B_log_dt': _B_in['log_dt'], 'B_Dskip': _B_in['Dskip'], 'gate_w': _w((lambda *s: torch.randn(*s, dtype=torch.bfloat16) * 0.05)(640) * 16.0)}

def reference(A_x, A_mem0, A_Wq, A_Wk, A_Wv, A_Wo, A_seg_len, B_u, B_A_re, B_A_im, B_B_re, B_B_im, B_C_re, B_C_im, B_log_dt, B_Dskip, gate_w):

    def _A_ref(x, mem0, Wq, Wk, Wv, Wo, seg_len):
        B, S, Dm = x.shape
        H, Dh = (Wq.shape[1], Wq.shape[2])
        M = mem0.shape[1]
        scale = Dh ** (-0.5)
        n_seg = S // seg_len
        L = M + seg_len
        idx = torch.arange(L)
        mask = (idx[:, None] < M) | (idx[:, None] >= idx[None, :])
        mem = mem0
        outs = []
        for s in range(n_seg):
            xs = x[:, s * seg_len:(s + 1) * seg_len, :].clone()
            h = torch.concatenate([mem, xs], axis=1)
            q = torch.einsum('btd,dhe->bhte', h, Wq)
            k = torch.einsum('btd,dhe->bhte', h, Wk)
            v = torch.einsum('btd,dhe->bhte', h, Wv)
            scores = torch.einsum('bhqe,bhke->bhqk', q, k) * scale
            scores = torch.where(mask[None, None], scores, -1000000000.0)
            p = _softmax(scores, axis=-1)
            o = torch.einsum('bhqk,bhke->bhqe', p, v)
            o = torch.einsum('bhte,hed->btd', o, Wo)
            mem = o[:, :M, :].clone()
            outs.append(o[:, M:, :])
        return torch.concatenate(outs, axis=1)

    def _B_ref(u, A_re, A_im, B_re, B_im, C_re, C_im, log_dt, Dskip):
        Bsz, L, D = u.shape
        dt = torch.exp(log_dt)[:, None]
        A = A_re + 1j * A_im
        Bc = B_re + 1j * B_im
        Cc = C_re + 1j * C_im
        logdA = dt * A
        dB = dt * Bc
        l = (lambda x, dt: x.to(dt))(torch.arange(L), A_re.dtype)
        P = torch.exp(logdA[:, :, None] * l[None, None, :])
        K = torch.einsum('dn,dnl,dn->dl', Cc, P, dB).real
        L2 = 2 * L
        Kp = _pad(K, ((0, 0), (0, L)))
        up = (lambda x, *d: x.permute(*d))(u, 0, 2, 1)
        up = _pad(up, ((0, 0), (0, 0), (0, L)))
        Kf = (lambda x, axes=(-2, -1): torch.fft.rfft2(x.float(), dim=axes))(Kp[:, None, :], axes=(-2, -1))
        Uf = (lambda x, axes=(-2, -1): torch.fft.rfft2(x.float(), dim=axes))(up[:, :, None, :], axes=(-2, -1))
        Yf = Uf * Kf[None, :, :, :]
        y = (lambda x, s, axes=(-2, -1): torch.fft.irfft2(x, s=s, dim=axes).to(torch.bfloat16))(Yf, (1, L2), axes=(-2, -1))[:, :, 0, :L]
        y = (lambda x, *d: x.permute(*d))(y, 0, 2, 1) + u * Dskip[None, None, :]
        return y
    x = A_x
    g = _sigmoid((x * gate_w).sum(-1, keepdims=True))
    a = _A_ref(x, A_mem0, A_Wq, A_Wk, A_Wv, A_Wo, A_seg_len)
    b = _B_ref(x, B_A_re, B_A_im, B_B_re, B_B_im, B_C_re, B_C_im, B_log_dt, B_Dskip)
    return g * a + (1 - g) * b
```

```python
class Asm:
    def __init__(self):
        self.lines = []
        self._lbl = 0
    def __call__(self, s, *more):
        for x in (s,) + more:
            for ln in x.split("\n"):
                ln = ln.strip()
                if ln:
                    self.lines.append("    " + ln)
    def label(self, name):
        self.lines.append(name + ":")
    def newlabel(self, pfx="L"):
        self._lbl += 1
        return f"{pfx}_{self._lbl}"
    def comment(self, s):
        self.lines.append("    ; " + s)
    def raw(self, s):
        self.lines.append(s)
    def nop(self, n):
        while n > 0:
            k = min(n, 16)
            self(f"s_nop {k-1}")
            n -= k
    def text(self):
        return "\n".join(self.lines) + "\n"

def v(i, n=1):
    return f"v{i}" if n == 1 else f"v[{i}:{i+n-1}]"
def a(i, n=1):
    return f"a{i}" if n == 1 else f"a[{i}:{i+n-1}]"
def s(i, n=1):
    return f"s{i}" if n == 1 else f"s[{i}:{i+n-1}]"

def kernel_begin(A, name):
    A.raw(f".globl {name}")
    A.raw(".p2align 8")
    A.raw(f".type {name},@function")
    A.label(name)

def kernel_desc(name, vgpr, sgpr=102, accum=None, extra=""):
    if accum is None:
        accum = min(256, (vgpr + 3) // 4 * 4)
    return f""".section .rodata,"a"
.p2align 6
.amdhsa_kernel {name}
  .amdhsa_next_free_vgpr {vgpr}
  .amdhsa_next_free_sgpr {sgpr}
  .amdhsa_accum_offset {accum}
  .amdhsa_group_segment_fixed_size 0
  .amdhsa_kernarg_size 160
  .amdhsa_user_sgpr_count 2
  .amdhsa_user_sgpr_kernarg_segment_ptr 1
  .amdhsa_system_sgpr_workgroup_id_x 1
{extra}.end_amdhsa_kernel
.text
"""

def srd(A, dst, base, nbytes):
    A(f"s_mov_b32 s{dst}, s{base}",
      f"s_and_b32 s{dst+1}, s{base+1}, 0xffff",
      f"s_mov_b32 s{dst+2}, {nbytes}",
      f"s_mov_b32 s{dst+3}, 0x00020000")

KA = dict(x=0, mem0=8, Wq=16, Wk=24, Wv=32, Wo=40, seg=48, u=56, Are=64, Aim=72, Bre=80, Bim=88, Cre=96, Cim=104,
          logdt=112, Dskip=120, gate=128, out=136, dbg=144, ws=152)
MiB = 1 << 20
WS_KX = 0
WS_VT = 16 * MiB
WS_Q = 32 * MiB
WS_O = 48 * MiB
WS_KM = 64 * MiB
WS_VM = 68 * MiB
WS_Y = 72 * MiB
WS_KT = 80 * MiB
WS_RING = 96 * MiB
WS_BYTES = 268435456
```

```python
from asmgen import *
import math, struct
def f32bits(x):
    return struct.unpack("<I", struct.pack("<f", x))[0]
SCALE = 128 ** -0.5

class AttnRegs:
    def __init__(self, vb, sb):
        self.vQoff = vb; self.vKoff = vb + 1; self.vKMoff = vb + 2; self.vVoff = vb + 3; self.vVMoff = vb + 4; self.vOoff = vb + 5
        self.vT = vb + 6
        b = (vb + 12 + 3) // 4 * 4
        self.vMask = b
        self.vQ = b + 16
        self.vK = b + 48
        self.vKM = b + 80
        self.vV = b + 112
        self.vVM = b + 144
        self.vDX = b + 152
        self.vDM = b + 168
        self.vP = b + 184
        self.vO = self.vK
        self.vEnd = b + 196
        self.sT = sb

def attn_setup(A, R, vL):
    T = R.vT
    A(f"v_and_b32 v{T}, 31, v{vL}", f"v_lshrrev_b32 v{T+1}, 5, v{vL}")
    A(f"v_lshlrev_b32 v{T+2}, 4, v{T+1}", f"v_lshl_add_u32 v{R.vQoff}, v{T}, 13, v{T+2}", f"v_mov_b32 v{R.vOoff}, v{R.vQoff}")
    A(f"v_and_b32 v{T+3}, 0x13, v{T}", f"v_bfe_u32 v{T+4}, v{T}, 2, 1", f"v_lshl_add_u32 v{T+3}, v{T+4}, 3, v{T+3}",
      f"v_bfe_u32 v{T+4}, v{T}, 3, 1", f"v_lshl_add_u32 v{T+3}, v{T+4}, 2, v{T+3}", f"v_lshl_add_u32 v{R.vKoff}, v{T+3}, 13, v{T+2}")
    A(f"v_and_b32 v{T+3}, 7, v{T}", f"v_lshl_add_u32 v{R.vKMoff}, v{T+3}, 13, v{T+2}")
    A(f"v_lshl_add_u32 v{R.vVoff}, v{T}, 12, v{T+2}")
    A(f"v_lshlrev_b32 v{T+3}, 3, v{T+1}", f"v_lshl_add_u32 v{R.vVMoff}, v{T}, 4, v{T+3}")
    A(f"v_lshlrev_b32 v{T+3}, 3, v{T+1}", f"v_sub_u32 v{T+3}, v{T}, v{T+3}")
    A(f"v_mov_b32 v{T+4}, 0xff800000")
    for r in range(16):
        a_, b_ = r >> 2, r & 3
        c = 16 * (a_ >> 1) + 4 * (a_ & 1) + b_
        A(f"v_cmp_gt_i32 vcc, {c}, v{T+3}", "s_nop 1", f"v_cndmask_b32 v{R.vMask+r}, 0, v{T+4}, vcc")

def rnd_bf16(A, regs, tmp):
    for i in range(0, len(regs), 2):
        A(f"v_cvt_pk_bf16_f32 v{tmp}, v{regs[i]}, v{regs[i+1]}")
        A(f"v_lshlrev_b32 v{regs[i]}, 16, v{tmp}", f"v_and_b32 v{regs[i+1]}, 0xffff0000, v{tmp}")

def attn_task(A, R, sWS, sSeg, sHead, ldflags="", stflags=""):
    S = R.sT; T = R.vT
    A(f"s_lshl_b32 s{S}, s{sSeg}, 18", f"s_lshl_b32 s{S+1}, s{sHead}, 8", f"s_add_u32 s{S}, s{S}, s{S+1}")
    A(f"s_add_u32 s{S+2}, s{S}, {WS_Q}", f"s_add_u32 s{S+3}, s{S}, {WS_KX}", f"s_add_u32 s{S+4}, s{S}, {WS_O}")
    A(f"s_lshl_b32 s{S+5}, s{sSeg}, 16", f"s_add_u32 s{S+6}, s{S+5}, s{S+1}", f"s_add_u32 s{S+6}, s{S+6}, {WS_KM}")
    for ks in range(8):
        A(f"buffer_load_dwordx4 {v(R.vQ+4*ks,4)}, v{R.vQoff}, s[{sWS}:{sWS+3}], s{S+2} offen offset:{ks*32} {ldflags}")
        A(f"buffer_load_dwordx4 {v(R.vK+4*ks,4)}, v{R.vKoff}, s[{sWS}:{sWS+3}], s{S+3} offen offset:{ks*32} {ldflags}")
        A(f"buffer_load_dwordx4 {v(R.vKM+4*ks,4)}, v{R.vKMoff}, s[{sWS}:{sWS+3}], s{S+6} offen offset:{ks*32} {ldflags}")
    A(f"s_lshl_b32 s{S+2}, s{sHead}, 19", f"s_lshl_b32 s{S+3}, s{sSeg}, 6", f"s_add_u32 s{S+2}, s{S+2}, s{S+3}", f"s_add_u32 s{S+2}, s{S+2}, {WS_VT}")
    A(f"s_lshl_b32 s{S+3}, s{sHead}, 11", f"s_add_u32 s{S+3}, s{S+3}, s{S+5}", f"s_add_u32 s{S+3}, s{S+3}, {WS_VM}")
    for et in range(4):
        A(f"s_add_u32 s{S+7}, s{S+2}, {et*32*4096}")
        for u in range(2):
            A(f"buffer_load_dwordx4 {v(R.vV+8*et+4*u,4)}, v{R.vVoff}, s[{sWS}:{sWS+3}], s{S+7} offen offset:{u*32} {ldflags}")
        A(f"buffer_load_dwordx2 {v(R.vVM+2*et,2)}, v{R.vVMoff}, s[{sWS}:{sWS+3}], s{S+3} offen offset:{et*512} {ldflags}")
    for ks in range(8):
        A(f"s_waitcnt vmcnt({12 + 3*(7-ks)})")
        c = "0" if ks == 0 else v(R.vDX, 16)
        A(f"v_mfma_f32_32x32x16_bf16 {v(R.vDX,16)}, {v(R.vK+4*ks,4)}, {v(R.vQ+4*ks,4)}, {c}")
        c = "0" if ks == 0 else v(R.vDM, 16)
        A(f"v_mfma_f32_32x32x16_bf16 {v(R.vDM,16)}, {v(R.vKM+4*ks,4)}, {v(R.vQ+4*ks,4)}, {c}")
    A.nop(12)
    sc = list(range(R.vDX, R.vDX + 16)) + list(range(R.vDM, R.vDM + 4))
    rnd_bf16(A, sc, T)
    A(f"s_mov_b32 s{S+5}, {f32bits(SCALE):#x}", f"s_mov_b32 s{S+6}, {f32bits(math.log2(math.e)):#x}")
    for r_ in sc:
        A(f"v_mul_f32 v{r_}, s{S+5}, v{r_}")
    rnd_bf16(A, sc, T)
    for r in range(16):
        A(f"v_add_f32 v{R.vDX+r}, v{R.vDX+r}, v{R.vMask+r}")
    A(f"v_max3_f32 v{T}, v{sc[0]}, v{sc[1]}, v{sc[2]}")
    for i in range(3, 19, 2):
        A(f"v_max3_f32 v{T}, v{T}, v{sc[i]}, v{sc[i+1]}")
    A(f"v_max_f32 v{T}, v{T}, v{sc[19]}")
    A(f"v_mov_b32 v{T+1}, v{T}", "s_nop 1", f"v_permlane32_swap_b32 v{T}, v{T+1}", f"v_max_f32 v{T}, v{T}, v{T+1}")
    A(f"v_mul_f32 v{T}, s{S+6}, v{T}")
    for r_ in sc:
        A(f"v_fma_f32 v{r_}, v{r_}, s{S+6}, -v{T}")
    for r_ in sc:
        A(f"v_exp_f32 v{r_}, v{r_}")
    A("s_nop 0")
    for i in range(8):
        A(f"v_cvt_pk_bf16_f32 v{R.vP+i}, v{R.vDX+2*i}, v{R.vDX+2*i+1}")
    for i in range(2):
        A(f"v_cvt_pk_bf16_f32 v{R.vP+8+i}, v{R.vDM+2*i}, v{R.vDM+2*i+1}")
    A("s_waitcnt vmcnt(0)")
    A(f"v_add_f32 v{T}, v{sc[0]}, v{sc[1]}")
    for et in range(4):
        o = v(R.vO + 16*et, 16)
        A(f"v_mfma_f32_32x32x16_bf16 {o}, {v(R.vV+8*et,4)}, {v(R.vP,4)}, 0")
        A(f"v_mfma_f32_32x32x16_bf16 {o}, {v(R.vV+8*et+4,4)}, {v(R.vP+4,4)}, {o}")
        A(f"v_mfma_f32_32x32x8_bf16 {o}, {v(R.vVM+2*et,2)}, {v(R.vP+8,2)}, {o}")
    for i in range(2, 20):
        A(f"v_add_f32 v{T}, v{T}, v{sc[i]}")
    A(f"v_mov_b32 v{T+1}, v{T}", "s_nop 1", f"v_permlane32_swap_b32 v{T}, v{T+1}", f"v_add_f32 v{T}, v{T}, v{T+1}")
    A(f"v_rcp_f32 v{T}, v{T}")
    A.nop(12)
    for et in range(4):
        o = R.vO + 16 * et
        F = R.vQ + 8 * et
        for i in range(16):
            A(f"v_mul_f32 v{o+i}, v{o+i}, v{T}")
        for g in range(4):
            A(f"v_cvt_pk_bf16_f32 v{F+2*g}, v{o+4*g}, v{o+4*g+1}", f"v_cvt_pk_bf16_f32 v{F+2*g+1}, v{o+4*g+2}, v{o+4*g+3}")
        A("s_nop 1")
        for p in range(2):
            A(f"v_permlane32_swap_b32 v{F+4*p}, v{F+4*p+2}", f"v_permlane32_swap_b32 v{F+4*p+1}, v{F+4*p+3}")
        for p in range(2):
            A(f"buffer_store_dwordx4 {v(F+4*p,4)}, v{R.vOoff}, s[{sWS}:{sWS+3}], s{S+4} offen offset:{et*64+p*32} {stflags}")

def gen_attn(A, name):
    kernel_begin(A, name)
    R = AttnRegs(2, 16)
    vL = 1
    A("s_cmp_ge_u32 s2, 512", f"s_cbranch_scc1 {name}_exit")
    A(f"s_load_dwordx2 s[8:9], s[0:1], {KA['ws']}")
    A(f"v_lshrrev_b32 v{R.vT}, 6, v0", f"v_and_b32 v{vL}, 63, v0", "s_nop 0", f"v_readfirstlane_b32 s12, v{R.vT}")
    A("s_waitcnt lgkmcnt(0)")
    srd(A, 4, 8, WS_BYTES)
    attn_setup(A, R, vL)
    A("s_lshl_b32 s13, s2, 2", "s_add_u32 s13, s13, s12", "s_lshr_b32 s14, s13, 5", "s_and_b32 s15, s13, 31")
    attn_task(A, R, 4, 14, 15)
    A.label(f"{name}_exit")
    A("s_endpgm")
    assert R.vEnd <= 512
    return kernel_desc(name, R.vEnd, 102, 256) if R.vEnd > 256 else kernel_desc(name, R.vEnd, 102)
```

```python
from asmgen import *

NSLOT = 4
D_R1, D_R2A, D_R2B, D_R2C, D_GAP = 2, 1, 6, 1, 2
SLOT = 512 * 1024
R1_OFF = 0
R2A_OFF = 196608
R2B_OFF = R2A_OFF + 65536
R2C_OFF = R2B_OFF + 81920
RING_USED = R2C_OFF + 40960
WS_RING2 = WS_RING + 2 * MiB
SLOT2 = 256 * 1024

L_MEM = 0
L_Q = 10240
L_K = L_Q + 640
L_V = 12288
L_WO = 16384
L_MISC = 20480

SCALE = 128 ** -0.5
import math, struct
def f32bits(x):
    return struct.unpack("<I", struct.pack("<f", x))[0]

def gen_chain(A, name, timing=True, nsteps=64, prof=False):
    kernel_begin(A, name)
    sWS = 4; sT = 8
    sX, sR, sW, sS = 12, 13, 14, 15
    sSlot, sOld = 16, 17
    sT0, sT1, sT2, sT3 = 18, 19, 26, 27
    sJ8, sJ10, sG2 = 20, 22, 24
    sKX, sVT, sEXP = 28, 29, 30
    sSel = 31
    sPtr = 32
    sB1, sB2, sB3 = 48, 49, 50
    sC = 51
    sTm0 = 52
    sH0 = 56
    vL, vIdx, vL16 = 0, 1, 2
    (vR2cLd, vLmemW, vLqkW, vLqR, vLkR, vR1St, vR1Ld, vR2aSt, vR2aLd, vR2bSt, vR2bLd, vR2cSt, vKX, vVTE, vVTO, vKMst, vVMst,
     vLvW, vLvR, vLwoW, vTmpA, vTmpB, vG, vJ) = range(3, 27)
    vNEG = 27
    vPOIS = 28
    vM = 32
    vD = 72
    vDV = 76
    vP = 80
    vKA = 104
    vQB = 108
    vS = 112
    vVXE = 116; vVXO = 120
    vX = 124
    vZ = 126
    vXS = 146
    vSS = 128
    vPP = 140
    vOE = 148; vOO = 152
    vT = 156
    vWE = 172; vWO_ = 176
    vKN = 180; vVNE = 184; vVNO = 188
    NV = 192
    aQK, aV, aWO = 0, 80, 120
    NA = 184

    A(f"s_load_dwordx16 s[{sPtr}:{sPtr+15}], s[0:1], 0")
    A(f"s_load_dwordx4 s[{60}:{63}], s[0:1], {KA['dbg']}")
    A(f"s_getreg_b32 s{sX}, hwreg(HW_REG_XCC_ID)")
    A(f"s_and_b32 s{sX}, s{sX}, 15")
    A(f"v_lshrrev_b32 v{vTmpA}, 6, v0", f"v_and_b32 v{vL}, 63, v0")
    A("s_nop 0")
    A(f"v_readfirstlane_b32 s{sW}, v{vTmpA}")
    A("s_waitcnt lgkmcnt(0)")
    srd(A, sWS, 62, WS_BYTES)
    srd(A, sT, 60, 256)
    lskip = A.newlabel("Lrank")
    A(f"s_cmp_lg_u32 s{sW}, 0", f"s_cbranch_scc1 {lskip}")
    A(f"v_mov_b32 v{vTmpA}, 1", f"v_mov_b32 v{vTmpB}, s{sX}", f"v_lshlrev_b32 v{vTmpB}, 2, v{vTmpB}")
    A("s_mov_b64 exec, 1")
    A(f"buffer_atomic_add v{vTmpA}, v{vTmpB}, s[{sT}:{sT+3}], 0 offen sc0")
    A("s_waitcnt vmcnt(0)")
    A(f"v_mov_b32 v{vTmpB}, {L_MISC}")
    A(f"ds_write_b32 v{vTmpB}, v{vTmpA}")
    A("s_waitcnt lgkmcnt(0)")
    A("s_mov_b64 exec, -1")
    A.label(lskip)
    A("s_barrier")
    A(f"v_mov_b32 v{vTmpB}, {L_MISC}")
    A(f"ds_read_b32 v{vTmpA}, v{vTmpB}")
    A("s_waitcnt lgkmcnt(0)")
    A(f"v_readfirstlane_b32 s{sR}, v{vTmpA}")
    lexit = name + "_exit"
    A("s_nop 3")
    A(f"s_cmp_ge_u32 s{sX}, 4", f"s_cbranch_scc1 {lexit}")
    A(f"s_cmp_ge_u32 s{sR}, 32", f"s_cbranch_scc1 {lexit}")
    A(f"s_mov_b32 s{sJ8}, 0x00ff00ff", f"s_mov_b32 s{sJ8+1}, 0x00ff00ff")
    A(f"s_mov_b32 s{sJ10}, 0x03ff03ff", f"s_mov_b32 s{sJ10+1}, 0x03ff03ff")
    A(f"s_mov_b32 s{sG2}, -1", f"s_mov_b32 s{sG2+1}, 0")
    A(f"s_mov_b32 s{sC}, {f32bits(SCALE * math.log2(math.e)):#x}")
    A(f"v_lshrrev_b32 v{vG}, 4, v{vL}", f"v_and_b32 v{vJ}, 15, v{vL}", f"v_lshlrev_b32 v{vL16}, 4, v{vL}")
    A(f"v_mov_b32 v{vNEG}, 0xff800000")
    for i in range(4):
        A(f"v_mov_b32 v{vPOIS+i}, -1")
    A(f"v_mov_b32 v{vIdx}, 0xeeee", f"v_mov_b32 v{vTmpA}, 0x4444")
    A(f"v_cndmask_b32 v{vIdx}, v{vIdx}, v{vTmpA}, s[{sJ8}:{sJ8+1}]")
    A(f"s_lshl_b32 s{sH0}, s{sX}, 10", f"s_lshl_b32 s{sT0}, s{sR}, 5", f"s_add_u32 s{sH0}, s{sH0}, s{sT0}")
    A(f"s_mul_i32 s{sT0}, s{sW}, 3", f"s_min_u32 s{sT0}, s{sT0}, 7", f"s_lshl_b32 s{sT0}, s{sT0}, 10")
    A(f"v_add_u32 v{vLmemW}, s{sT0}, v{vL16}")
    A(f"s_mul_i32 s{sT1}, s{sX}, 10240", f"s_add_u32 s{sT1}, s{sT1}, {WS_RING + R2C_OFF}")
    A(f"v_add_u32 v{vR2cLd}, s{sT1}, v{vLmemW}")
    A(f"v_and_b32 v{vTmpA}, 1, v{vG}", f"v_lshlrev_b32 v{vTmpA}, 2, v{vTmpA}", f"v_lshrrev_b32 v{vTmpB}, 1, v{vG}",
      f"v_lshl_add_u32 v{vTmpA}, v{vTmpB}, 1, v{vTmpA}", f"v_mul_u32_u24 v{vTmpA}, 80, v{vTmpA}",
      f"v_lshl_add_u32 v{vTmpA}, v{vJ}, 2, v{vTmpA}")
    A(f"s_lshr_b32 s{sT0}, s{sW}, 1", f"s_mul_i32 s{sT0}, s{sT0}, 640", f"s_and_b32 s{sT1}, s{sW}, 1", f"s_lshl_b32 s{sT1}, s{sT1}, 1",
      f"s_add_u32 s{sT0}, s{sT0}, s{sT1}", f"s_add_u32 s{sT0}, s{sT0}, {L_Q}")
    A(f"v_add_u32 v{vLqkW}, s{sT0}, v{vTmpA}")
    A(f"v_and_b32 v{vTmpA}, 7, v{vL}", f"v_mul_u32_u24 v{vTmpB}, 80, v{vTmpA}", f"v_lshl_add_u32 v{vTmpB}, v{vG}, 4, v{vTmpB}",
      f"v_add_u32 v{vLqR}, {L_Q}, v{vTmpB}", f"v_add_u32 v{vLkR}, {L_K}, v{vTmpB}")
    A(f"v_lshl_add_u32 v{vTmpA}, v{vG}, 3, v{vTmpA}", f"v_lshlrev_b32 v{vTmpA}, 4, v{vTmpA}")
    A(f"s_lshl_b32 s{sT0}, s{sX}, 5", f"s_add_u32 s{sT0}, s{sT0}, s{sR}", f"s_mul_i32 s{sT1}, s{sT0}, 1536",
      f"s_lshl_b32 s{sT2}, s{sW}, 9", f"s_add_u32 s{sT1}, s{sT1}, s{sT2}", f"s_add_u32 s{sT1}, s{sT1}, {WS_RING + R1_OFF}")
    A(f"v_add_u32 v{vR1St}, s{sT1}, v{vTmpA}")
    A(f"s_and_b32 s{sT0}, s{sT0}, 0xfffffffc", f"s_mul_i32 s{sT1}, s{sT0}, 1536", f"s_add_u32 s{sT1}, s{sT1}, {WS_RING + R1_OFF}")
    A(f"v_bfe_u32 v{vTmpB}, v{vL}, 3, 1", f"v_mul_u32_u24 v{vTmpB}, 3072, v{vTmpB}", f"v_add3_u32 v{vR1Ld}, s{sT1}, v{vTmpA}, v{vTmpB}")
    A(f"s_lshl_b32 s{sT0}, s{sX}, 14", f"s_add_u32 s{sT0}, s{sT0}, {WS_RING + R2A_OFF}",
      f"s_lshr_b32 s{sT1}, s{sR}, 1", f"s_lshl_b32 s{sT1}, s{sT1}, 10", f"s_and_b32 s{sT2}, s{sR}, 1", f"s_lshl_b32 s{sT2}, s{sT2}, 7",
      f"s_add_u32 s{sT1}, s{sT1}, s{sT2}", f"s_add_u32 s{sT1}, s{sT1}, s{sT0}")
    A(f"v_and_b32 v{vTmpA}, 7, v{vL}", f"v_lshlrev_b32 v{vTmpA}, 4, v{vTmpA}", f"v_lshl_add_u32 v{vTmpA}, v{vG}, 8, v{vTmpA}",
      f"v_add_u32 v{vR2aSt}, s{sT1}, v{vTmpA}")
    A(f"s_lshl_b32 s{sT1}, s{sW}, 12", f"s_add_u32 s{sT1}, s{sT1}, s{sT0}", f"v_add_u32 v{vR2aLd}, s{sT1}, v{vL16}")
    A(f"s_lshr_b32 s{sT0}, s{sR}, 1", f"s_lshl_b32 s{sT0}, s{sT0}, 14", f"s_and_b32 s{sT1}, s{sR}, 1", f"s_lshl_b32 s{sT1}, s{sT1}, 12",
      f"s_add_u32 s{sT0}, s{sT0}, s{sT1}", f"s_add_u32 s{sT0}, s{sT0}, {WS_RING2}")
    A(f"v_min_u32 v{vTmpA}, 9, v{vJ}", f"v_mad_u32_u24 v{vTmpA}, v{vG}, 10, v{vTmpA}", f"v_lshlrev_b32 v{vTmpA}, 4, v{vTmpA}",
      f"v_add_u32 v{vR2bLd}, s{sT0}, v{vTmpA}")
    A(f"s_mul_i32 s{sT1}, s{sX}, 640", f"v_add_u32 v{vR2bSt}, s{sT1}, v{vR2bLd}")
    for k, sb in ((1, sB1), (2, sB2), (3, sB3)):
        A(f"s_add_u32 s{sb}, s{sX}, {k}", f"s_and_b32 s{sb}, s{sb}, 3", f"s_mul_i32 s{sb}, s{sb}, 640")
    A(f"s_mul_i32 s{sT0}, s{sR}, 5")
    A(f"v_min_u32 v{vTmpA}, 9, v{vJ}", f"v_lshrrev_b32 v{vTmpB}, 1, v{vTmpA}", f"v_add_u32 v{vTmpB}, s{sT0}, v{vTmpB}")
    A(f"v_and_b32 v{vTmpA}, 1, v{vTmpA}", f"v_lshlrev_b32 v{vTmpA}, 7, v{vTmpA}")
    A(f"v_lshrrev_b32 v{vT}, 2, v{vTmpB}", f"v_lshl_add_u32 v{vTmpA}, v{vT}, 8, v{vTmpA}")
    A(f"v_and_b32 v{vT}, 3, v{vTmpB}", f"v_lshl_add_u32 v{vTmpA}, v{vT}, 2, v{vTmpA}")
    A(f"v_and_b32 v{vT}, 1, v{vG}", f"v_lshl_add_u32 v{vTmpA}, v{vT}, 6, v{vTmpA}", f"v_lshrrev_b32 v{vT}, 1, v{vG}",
      f"v_lshl_add_u32 v{vTmpA}, v{vT}, 4, v{vTmpA}")
    A(f"s_mul_i32 s{sT1}, s{sX}, 10240", f"s_add_u32 s{sT1}, s{sT1}, {WS_RING + R2C_OFF}", f"v_add_u32 v{vR2cSt}, s{sT1}, v{vTmpA}")
    A(f"v_lshrrev_b32 v{vTmpA}, 2, v{vJ}", f"v_lshlrev_b32 v{vTmpA}, 3, v{vTmpA}", f"v_and_b32 v{vTmpB}, 3, v{vJ}", f"v_add_u32 v{vTmpA}, v{vTmpA}, v{vTmpB}")
    A(f"s_add_u32 s{sT0}, s{sW}, 3", f"s_and_b32 s{sT0}, s{sT0}, 1", f"s_lshl_b32 s{sT0}, s{sT0}, 2")
    A(f"v_add_u32 v{vTmpA}, s{sT0}, v{vTmpA}", f"v_lshlrev_b32 v{vTmpA}, 13, v{vTmpA}", f"v_lshl_add_u32 v{vTmpA}, v{vG}, 4, v{vTmpA}")
    A(f"s_lshl_b32 s{sT1}, s{sH0}, 1", f"v_add_u32 v{vKX}, s{sT1}, v{vTmpA}")
    A(f"v_lshlrev_b32 v{vTmpA}, 13, v{vJ}", f"v_lshl_add_u32 v{vTmpA}, v{vG}, 4, v{vTmpA}")
    A(f"s_lshl_b32 s{sT1}, s{sH0}, 12", f"s_add_u32 s{sT1}, s{sT1}, {WS_VT}", f"v_add_u32 v{vVTE}, s{sT1}, v{vTmpA}", f"v_add_u32 v{vVTO}, 4096, v{vVTE}")
    A(f"v_and_b32 v{vTmpA}, 7, v{vL}", f"v_lshlrev_b32 v{vTmpA}, 13, v{vTmpA}", f"v_lshl_add_u32 v{vTmpA}, v{vG}, 4, v{vTmpA}")
    A(f"s_lshl_b32 s{sT1}, s{sH0}, 1", f"s_add_u32 s{sT1}, s{sT1}, {WS_KM}", f"v_add_u32 v{vKMst}, s{sT1}, v{vTmpA}")
    A(f"v_lshrrev_b32 v{vTmpA}, 1, v{vG}", f"v_lshl_add_u32 v{vTmpA}, v{vJ}, 1, v{vTmpA}", f"v_lshlrev_b32 v{vTmpA}, 4, v{vTmpA}",
      f"v_and_b32 v{vTmpB}, 1, v{vG}", f"v_lshl_add_u32 v{vTmpA}, v{vTmpB}, 3, v{vTmpA}")
    A(f"s_lshl_b32 s{sT1}, s{sH0}, 4", f"s_add_u32 s{sT1}, s{sT1}, {WS_VM}", f"v_add_u32 v{vVMst}, s{sT1}, v{vTmpA}")
    A(f"s_lshl_b32 s{sT0}, s{sW}, 10", f"v_add_u32 v{vTmpA}, s{sT0}, v{vL16}", f"v_add_u32 v{vLvW}, {L_V}, v{vTmpA}", f"v_add_u32 v{vLwoW}, {L_WO}, v{vTmpA}")
    A(f"v_lshrrev_b32 v{vTmpA}, 1, v{vG}", f"v_lshlrev_b32 v{vTmpA}, 10, v{vTmpA}", f"v_and_b32 v{vTmpB}, 31, v{vL}",
      f"v_lshl_add_u32 v{vTmpA}, v{vTmpB}, 4, v{vTmpA}", f"v_add_u32 v{vLvR}, {L_V}, v{vTmpA}")

    lnoprobe = A.newlabel("Lnoprobe")
    A(f"s_or_b32 s{sT0}, s{sX}, s{sR}", f"s_or_b32 s{sT0}, s{sT0}, s{sW}", f"s_cmp_lg_u32 s{sT0}, 0", f"s_cbranch_scc1 {lnoprobe}")
    A("s_mov_b64 exec, 1")
    PRB = WS_RING2 + 4 * SLOT2
    A(f"v_mov_b32 v{vTmpA}, {PRB}", f"v_mov_b32 v{vTmpB}, {PRB + 8192}")
    A(f"s_mov_b32 s{sT2}, -1", f"s_mov_b32 s{sT3}, -1", f"s_mov_b32 s{sT1}, 0")
    lprb = A.newlabel("Lprb")
    A.label(lprb)
    for par, va in ((0, vTmpA), (1, vTmpB)):
        A(f"buffer_store_dword v{vL}, v{va}, s[{sWS}:{sWS+3}], 0 offen sc1", "s_waitcnt vmcnt(0)")
        A("s_memtime s[82:83]", "s_waitcnt lgkmcnt(0)")
        A(f"buffer_load_dword v{vT}, v{va}, s[{sWS}:{sWS+3}], 0 offen sc1", "s_waitcnt vmcnt(0)")
        A("s_memtime s[84:85]", "s_waitcnt lgkmcnt(0)")
        A("s_sub_u32 s84, s84, s82", f"s_min_u32 s{sT2 + par}, s{sT2 + par}, s84")
    A(f"s_add_u32 s{sT1}, s{sT1}, 1", f"s_cmp_lt_u32 s{sT1}, 12", f"s_cbranch_scc1 {lprb}")
    A(f"s_cmp_lt_u32 s{sT3}, s{sT2}", f"s_cselect_b32 s{sT0}, 2, 1")
    A(f"v_mov_b32 v{vTmpA}, s{sT0}", f"v_mov_b32 v{vTmpB}, 64")
    A(f"buffer_store_dword v{vTmpA}, v{vTmpB}, s[{sT}:{sT+3}], 0 offen sc1")
    A(f"v_mov_b32 v{vT}, s{sT2}", f"v_mov_b32 v{vT+1}, s{sT3}")
    A(f"buffer_store_dwordx2 {v(vT,2)}, v{vTmpB}, s[{sT}:{sT+3}], 0 offen offset:8")
    A("s_mov_b64 exec, -1")
    A.label(lnoprobe)
    A(f"s_and_b32 s{sT0}, s{sW}, 1", f"s_cmp_eq_u32 s{sT0}, 0", f"s_mov_b32 s{sT1}, 0x05040100", f"s_mov_b32 s{sT2}, 0x07060302",
      f"s_cselect_b32 s{sSel}, s{sT1}, s{sT2}")
    vWb = vTmpA
    A(f"v_lshlrev_b32 v{vWb}, 16, v{vG}", f"v_lshl_add_u32 v{vWb}, v{vJ}, 2, v{vWb}", f"s_lshl_b32 s{sT1}, s{sH0}, 1", f"v_add_u32 v{vWb}, s{sT1}, v{vWb}")
    A(f"s_cmp_lt_u32 s{sW}, 2", f"s_cselect_b32 s{sT}, s{sPtr+4}, s{sPtr+6}", f"s_cselect_b32 s{sT+1}, s{sPtr+5}, s{sPtr+7}",
      f"s_and_b32 s{sT+1}, s{sT+1}, 0xffff", f"s_mov_b32 s{sT+2}, {640*4096*2}", f"s_mov_b32 s{sT+3}, 0x00020000")
    TB = [32, 48, 64, 80]
    def load_block(ti, rowbase_sexpr_fn):
        t = TB[ti]
        for dw in range(8):
            for b in range(2):
                rowbase_sexpr_fn(dw, b, t + dw * 2 + b)
    def perm_block(ti, adst, sel):
        t = TB[ti]
        for dw in range(8):
            A(f"v_perm_b32 v{t+dw*2}, v{t+dw*2+1}, v{t+dw*2}, {sel}")
        for dw in range(8):
            A(f"v_accvgpr_write_b32 a{adst+dw}, v{t+dw*2}")
    def qkv_loader(blk_s, blk_const):
        def fn(dw, b, dst):
            off = (64 * blk_const + 32 * (dw >> 2) + 2 * (dw & 3) + b) * 8192
            if blk_s is None:
                A(f"s_mov_b32 s{sT3}, {off}")
            else:
                A(f"s_add_u32 s{sT3}, s{blk_s}, {off}")
            A(f"buffer_load_dword v{dst}, v{vWb}, s[{sT}:{sT+3}], s{sT3} offen")
        return fn
    jobs = []
    for blk in range(10):
        jobs.append((qkv_loader(None, blk), aQK + 8 * blk, f"s{sSel}", None))
    def pre_v():
        A(f"s_mov_b32 s{sT}, s{sPtr+8}", f"s_and_b32 s{sT+1}, s{sPtr+9}, 0xffff")
        A(f"s_lshr_b32 s{sT2}, s{sW}, 1", f"s_mul_i32 s{sT2}, s{sT2}, {5*64*8192}")
    for blk in range(5):
        jobs.append((qkv_loader(sT2, blk), aV + 8 * blk, f"s{sSel}", pre_v if blk == 0 else None))
    DEPTH = 3
    n = len(jobs)
    for i in range(n + DEPTH):
        if i < n:
            if jobs[i][3]: jobs[i][3]()
            load_block(i % 4, jobs[i][0])
        k = i - DEPTH
        if k >= 0:
            outstanding = min(n, i + 1) - (k + 1)
            A(f"s_waitcnt vmcnt({min(63, outstanding*16)})")
            perm_block(k % 4, jobs[k][1], jobs[k][2])
    A(f"s_mov_b32 s{sT}, s{sPtr+10}", f"s_and_b32 s{sT+1}, s{sPtr+11}, 0xffff", f"s_mov_b32 s{sT+2}, {4096*640*2}")
    A(f"v_min_u32 v{vWb}, 9, v{vJ}", f"v_lshlrev_b32 v{vWb}, 2, v{vWb}", f"v_mul_u32_u24 v{vTmpB}, {4*1280}, v{vG}", f"v_add_u32 v{vWb}, v{vWb}, v{vTmpB}")
    A(f"s_mul_i32 s{sT0}, s{sR}, 40", f"v_add_u32 v{vWb}, s{sT0}, v{vWb}")
    A(f"s_lshl_b32 s{sT2}, s{sX}, 10", f"s_lshl_b32 s{sT0}, s{sW}, 8", f"s_add_u32 s{sT2}, s{sT2}, s{sT0}", f"s_mul_i32 s{sT2}, s{sT2}, 1280")
    A(f"s_mov_b32 s{sT0}, 0x05040100", f"s_mov_b32 s{sT1}, 0x07060302")
    for bb in range(4):
        t = TB[bb]
        for dw in range(8):
            hi, dq = dw >> 2, dw & 3
            row = 64 * bb + 32 * (dq & 1) + 16 * hi + 2 * (dq >> 1)
            A(f"s_add_u32 s{sT3}, s{sT2}, {row*1280}")
            A(f"buffer_load_dword v{t+dw*2}, v{vWb}, s[{sT}:{sT+3}], s{sT3} offen")
            A(f"buffer_load_dword v{t+dw*2+1}, v{vWb}, s[{sT}:{sT+3}], s{sT3} offen offset:1280")
    for bb in range(4):
        t = TB[bb]
        A(f"s_waitcnt vmcnt({(3-bb)*16})")
        for dw in range(8):
            A(f"v_perm_b32 v{vT}, v{t+dw*2+1}, v{t+dw*2}, s{sT0}", f"v_perm_b32 v{vT+1}, v{t+dw*2+1}, v{t+dw*2}, s{sT1}")
            A(f"v_accvgpr_write_b32 a{aWO + bb*8 + dw}, v{vT}", f"v_accvgpr_write_b32 a{aWO + 32 + bb*8 + dw}, v{vT+1}")
    A(f"s_mov_b32 s{sT}, s{sPtr+2}", f"s_and_b32 s{sT+1}, s{sPtr+3}, 0xffff", f"s_mov_b32 s{sT+2}, {8*640*2}")
    A(f"v_and_b32 v{vTmpA}, 7, v{vL}", f"v_mul_u32_u24 v{vTmpA}, 1280, v{vTmpA}", f"v_lshl_add_u32 v{vTmpA}, v{vG}, 5, v{vTmpA}",
      f"v_bfe_u32 v{vTmpB}, v{vL}, 3, 1", f"v_lshl_add_u32 v{vTmpA}, v{vTmpB}, 2, v{vTmpA}")
    A(f"s_mul_i32 s{sT0}, s{sW}, 3", f"s_min_u32 s{sT0}, s{sT0}, 7", f"s_lshl_b32 s{sT0}, s{sT0}, 7")
    for bb in range(3):
        for p in range(4):
            A(f"buffer_load_dword v{vP+bb*4+p}, v{vTmpA}, s[{sT}:{sT+3}], s{sT0} offen offset:{bb*128+p*8}")
    sPfK, sPfV = 90, 91
    A(f"s_lshl_b32 s{sT0}, s{sH0}, 1", f"s_and_b32 s{sT0}, s{sT0}, 0xffffff80", f"s_and_b32 s{sT1}, s{sR}, 1", f"s_mul_i32 s{sT1}, s{sT1}, {16*8192}",
      f"s_add_u32 s{sT0}, s{sT0}, s{sT1}", f"s_add_u32 s{sPfK}, s{sT0}, {WS_KX + 2*32*8192}")
    A(f"s_mul_i32 s{sT0}, s{sW}, {5*8192}", f"s_add_u32 s{sPfK}, s{sPfK}, s{sT0}")
    A(f"s_lshl_b32 s{sT0}, s{sH0}, 12", f"s_add_u32 s{sPfV}, s{sT0}, {WS_VT + 256}")
    srd(A, sT, 60, 256)
    lpar = A.newlabel("Lpar")
    A(f"v_mov_b32 v{vTmpB}, 64", f"s_mov_b32 s{sT1}, 0")
    A.label(lpar)
    A(f"buffer_load_dword v{vTmpA}, v{vTmpB}, s[{sT}:{sT+3}], 0 offen sc1", "s_waitcnt vmcnt(0)")
    A(f"v_readfirstlane_b32 s{sT0}, v{vTmpA}", f"s_add_u32 s{sT1}, s{sT1}, 1", f"s_cmp_gt_u32 s{sT1}, 0x40000", f"s_cbranch_scc1 {lexit}")
    A(f"s_cmp_eq_u32 s{sT0}, 0", f"s_cbranch_scc1 {lpar}")
    A(f"s_sub_u32 s{sT0}, s{sT0}, 1", f"s_lshl_b32 s{sT0}, s{sT0}, 13")
    A(f"v_add_u32 v{vR2bLd}, s{sT0}, v{vR2bLd}", f"v_add_u32 v{vR2bSt}, s{sT0}, v{vR2bSt}")
    A(f"s_mov_b32 s{sS}, 0", f"s_mov_b32 s{sKX}, 0", f"s_mov_b32 s{sVT}, 0", f"s_mov_b32 s{sEXP}, 0")
    A(f"s_mov_b32 s{sSlot}, 0", f"s_mov_b32 s{sOld}, {2*SLOT}")
    A("s_waitcnt vmcnt(0)")
    if timing:
        A(f"s_memrealtime s[{sTm0}:{sTm0+1}]", "s_waitcnt lgkmcnt(0)")

    sGuard = 57
    A(f"s_mov_b32 s{sGuard}, 0")
    retry_stubs = []
    def retry_branch(target):
        stub = A.newlabel("Lretry")
        retry_stubs.append((stub, target))
        A(f"s_cbranch_vccnz {stub}")
    def stamp(k):
        if not prof: return
        A("s_memtime s[82:83]", "s_waitcnt lgkmcnt(0)")
        A(f"s_sub_u32 s83, s82, s80", f"s_add_u32 s{64+k}, s{64+k}, s83", "s_mov_b32 s80, s82")
    if prof:
        for k in range(24):
            A(f"s_mov_b32 s{64+k}, 0")
        A("s_memtime s[82:83]", "s_waitcnt lgkmcnt(0)", "s_mov_b32 s80, s82")
    def sleep(n):
        if n > 0: A(f"s_sleep {n}")
    def masked_retry(target):
        stub = A.newlabel("Lretry")
        retry_stubs.append((stub, target))
        A(f"s_cbranch_vccnz {stub}")
        A("s_mov_b64 exec, -1")
    LOOP = name + "_loop"
    A.raw(".p2align 6")
    A.label(LOOP)
    for bb in range(3):
        A(f"ds_write_b128 v{vLmemW}, {v(vP+4*bb,4)} offset:{bb*1024}")
    lpfa = A.newlabel("Lpfa"); lpfb = A.newlabel("Lpfb")
    A(f"s_cmp_eq_u32 s{sW}, 0", f"s_cbranch_scc1 {lpfb}")
    A(f"s_cmp_eq_u32 s{sW}, 3", f"s_cbranch_scc1 {lpfa}")
    A(f"buffer_load_dwordx4 {v(vKA,4)}, v{vKX}, s[{sWS}:{sWS+3}], s{sKX} offen")
    A(f"s_branch {lpfb}")
    A.label(lpfa)
    A(f"buffer_load_dwordx4 {v(vVXE,4)}, v{vVTE}, s[{sWS}:{sWS+3}], s{sVT} offen")
    A(f"buffer_load_dwordx4 {v(vVXO,4)}, v{vVTO}, s[{sWS}:{sWS+3}], s{sVT} offen")
    A.label(lpfb)
    for i in range(4):
        A(f"v_mov_b32 v{vD+i}, 0")
    for i in range(4):
        A(f"v_mov_b32 v{vDV+i}, 0")
    A("s_waitcnt lgkmcnt(0)", "s_barrier")
    stamp(1)
    for b in range(10):
        A(f"ds_read_b128 {v(vM+4*b,4)}, v{vL16} offset:{L_MEM + b*1024}")
    for b in range(10):
        A(f"s_waitcnt lgkmcnt({9-b})")
        A(f"v_smfmac_f32_16x16x64_bf16 {v(vD,4)}, {v(vM+4*b,4)}, {a(aQK+8*b,8)}, v{vIdx}")
    A.nop(8)
    A(f"v_permlane32_swap_b32 v{vD}, v{vD+2}", f"v_permlane32_swap_b32 v{vD+1}, v{vD+3}")
    A(f"v_add_f32 v{vT}, v{vD}, v{vD+2}", f"v_add_f32 v{vT+1}, v{vD+1}, v{vD+3}")
    A(f"v_cvt_pk_bf16_f32 v{vT+2}, v{vT}, v{vT+1}")
    A(f"ds_write_b16 v{vLqkW}, v{vT+2}", f"ds_write_b16_d16_hi v{vLqkW}, v{vT+2} offset:80")
    A("s_waitcnt lgkmcnt(0)", "s_barrier")
    stamp(2)
    lW3 = A.newlabel("Lw3"); lJoin4 = A.newlabel("Ljoin4"); lNot0 = A.newlabel("Lnot0"); lVhi = A.newlabel("Lvhi"); lVdone = A.newlabel("Lvdone")
    lNoKM = A.newlabel("Lnokm"); lDone = name + "_done"; lDoneW3 = name + "_donew3"
    A(f"s_cmp_eq_u32 s{sW}, 3", f"s_cbranch_scc1 {lW3}")
    A(f"ds_read_b128 {v(vQB,4)}, v{vLqR}")
    A(f"s_cmp_lg_u32 s{sW}, 0", f"s_cbranch_scc1 {lNot0}")
    A(f"ds_read_b128 {v(vKA,4)}, v{vLkR}")
    A.label(lNot0)
    A("s_waitcnt vmcnt(0) lgkmcnt(0)")
    A(f"v_mfma_f32_16x16x32_bf16 {v(vS,4)}, {v(vKA,4)}, {v(vQB,4)}, 0")
    A(f"s_mov_b64 exec, s[{sJ8}:{sJ8+1}]")
    A.nop(7)
    for i in range(4):
        A(f"v_min_u32 v{vS+i}, -2, v{vS+i}")
    A(f"buffer_store_dwordx4 {v(vS,4)}, v{vR1St}, s[{sWS}:{sWS+3}], s{sSlot} offen")
    A(f"s_cmp_lg_u32 s{sW}, 0", f"s_cbranch_scc1 {lNoKM}")
    A(f"buffer_store_dwordx4 {v(vKA,4)}, v{vKMst}, s[{sWS}:{sWS+3}], s{sEXP} offen")
    A.label(lNoKM)
    A("s_mov_b64 exec, -1")
    A(f"s_cmp_eq_u32 s{sW}, 2", f"s_cbranch_scc1 {lVhi}")
    for b in range(5):
        A(f"v_smfmac_f32_16x16x64_bf16 {v(vDV,4)}, {v(vM+4*b,4)}, {a(aV+8*b,8)}, v{vIdx}")
    A(f"s_branch {lVdone}")
    A.label(lVhi)
    for b in range(5):
        A(f"v_smfmac_f32_16x16x64_bf16 {v(vDV,4)}, {v(vM+4*(5+b),4)}, {a(aV+8*b,8)}, v{vIdx}")
    A.label(lVdone)
    A.nop(8)
    A(f"ds_write_b128 v{vLvW}, {v(vDV,4)}")
    A("s_waitcnt lgkmcnt(0)", "s_barrier")
    stamp(3)
    A(f"s_cmp_eq_u32 s{sS}, {nsteps-1}", f"s_cbranch_scc1 {lDone}")
    for i in range(6):
        A(f"s_buffer_load_dwordx2 s[92:93], s[{sWS}:{sWS+3}], s{sPfK} offset:{i*8192+60}")
    A(f"s_add_u32 s{sPfK}, s{sPfK}, {32*8192}")
    A(f"s_branch {lJoin4}")
    A.label(lW3)
    lR1 = A.newlabel("Lr1"); lR1chk = A.newlabel("Lr1chk")
    def r1_loads():
        for pp in range(2):
            for t in range(3):
                A(f"buffer_load_dwordx4 {v(vP+(pp*3+t)*4,4)}, v{vR1Ld}, s[{sWS}:{sWS+3}], s{sSlot} offen offset:{pp*1536+t*512} sc1")
    for b in range(5):
        A(f"v_smfmac_f32_16x16x64_bf16 {v(vDV,4)}, {v(vM+4*(5+b),4)}, {a(aV+8*b,8)}, v{vIdx}")
    A(f"v_mov_b32 v{vZ}, 0", f"v_mov_b32 v{vZ+1}, 0")
    A.nop(6)
    A(f"ds_write_b128 v{vLvW}, {v(vDV,4)}")
    A("s_waitcnt lgkmcnt(0)")
    sleep(D_R1)
    r1_loads()
    A("s_barrier")
    stamp(3)
    for kh in range(2):
        for st in range(2):
            A(f"ds_read_b128 {v(vT+4*(kh*2+st),4)}, v{vLvR} offset:{kh*2048+st*512}")
    A("s_waitcnt lgkmcnt(0)")
    for i in range(4):
        A(f"v_add_f32 v{vT+i}, v{vT+i}, v{vT+4+i}", f"v_add_f32 v{vT+8+i}, v{vT+8+i}, v{vT+12+i}")
    for i in range(4):
        A(f"v_add_f32 v{vT+i}, v{vT+i}, v{vT+8+i}")
    A(f"v_cvt_pk_bf16_f32 v{vX}, v{vT}, v{vT+1}", f"v_cvt_pk_bf16_f32 v{vX+1}, v{vT+2}, v{vT+3}")
    A(f"v_mov_b32 v{vXS}, v{vX}", f"v_mov_b32 v{vXS+1}, v{vX+1}")
    A(f"s_cmp_eq_u32 s{sS}, {nsteps-1}", f"s_cbranch_scc1 {lDoneW3}")
    A(f"v_permlane32_swap_b32 v{vX}, v{vZ}", f"v_permlane32_swap_b32 v{vX+1}, v{vZ+1}")
    A.label(lR1)
    r1_loads()
    A("s_waitcnt vmcnt(6)")
    def maxtree_u32(regs, dst, tmp):
        cur = list(regs); ti = 0
        while len(cur) > 1:
            nxt = []
            i = 0
            while i < len(cur):
                if len(cur) - i >= 3:
                    d = tmp[ti]; ti += 1
                    A(f"v_max3_u32 v{d}, v{cur[i]}, v{cur[i+1]}, v{cur[i+2]}"); nxt.append(d); i += 3
                elif len(cur) - i == 2:
                    d = tmp[ti]; ti += 1
                    A(f"v_max_u32 v{d}, v{cur[i]}, v{cur[i+1]}"); nxt.append(d); i += 2
                else:
                    nxt.append(cur[i]); i += 1
            cur = nxt
        return cur[0]
    r = maxtree_u32(list(range(vP, vP + 24)), None, list(range(vT, vT + 16)))
    A(f"v_cmp_eq_u32 vcc, -1, v{r}")
    masked_retry(lR1)
    stamp(4)
    for i in range(12):
        A(f"v_add_f32 v{vSS+i}, v{vP+i}, v{vP+12+i}")
    for i in range(12):
        A(f"v_add_f32_dpp v{vSS+i}, v{vSS+i}, v{vSS+i} row_ror:8 row_mask:0xf bank_mask:0xf")
    for i in range(4):
        A(f"v_cndmask_b32 v{vSS+i}, v{vNEG}, v{vSS+i}, s[{sG2}:{sG2+1}]")
    A(f"v_max3_f32 v{vT}, v{vSS+4}, v{vSS+5}, v{vSS+6}", f"v_max3_f32 v{vT+1}, v{vSS+7}, v{vSS+8}, v{vSS+9}",
      f"v_max3_f32 v{vT+2}, v{vSS+10}, v{vSS+11}, v{vSS}", f"v_max3_f32 v{vT+3}, v{vSS+1}, v{vSS+2}, v{vSS+3}")
    A(f"v_max3_f32 v{vT}, v{vT}, v{vT+1}, v{vT+2}", f"v_max_f32 v{vT}, v{vT}, v{vT+3}")
    A(f"v_mov_b32 v{vT+1}, v{vT}", "s_nop 1", f"v_permlane16_swap_b32 v{vT}, v{vT+1}", f"v_max_f32 v{vT}, v{vT}, v{vT+1}")
    A(f"v_mov_b32 v{vT+1}, v{vT}", "s_nop 1", f"v_permlane32_swap_b32 v{vT}, v{vT+1}", f"v_max_f32 v{vT}, v{vT}, v{vT+1}")
    A(f"v_mul_f32 v{vT}, s{sC}, v{vT}")
    for i in range(12):
        A(f"v_fma_f32 v{vSS+i}, v{vSS+i}, s{sC}, -v{vT}")
    for i in range(12):
        A(f"v_exp_f32 v{vSS+i}, v{vSS+i}")
    A("s_nop 0")
    for i in range(4):
        A(f"v_cvt_pk_bf16_f32 v{vPP+i}, v{vSS+4+2*i}, v{vSS+5+2*i}")
    for i in range(2):
        A(f"v_cvt_pk_bf16_f32 v{vPP+4+i}, v{vSS+2*i}, v{vSS+1+2*i}")
    A(f"v_add_f32 v{vT}, v{vSS}, v{vSS+1}")
    A(f"v_mfma_f32_16x16x32_bf16 {v(vOE,4)}, {v(vVXE,4)}, {v(vPP,4)}, 0")
    A(f"v_mfma_f32_16x16x32_bf16 {v(vOO,4)}, {v(vVXO,4)}, {v(vPP,4)}, 0")
    A(f"v_mfma_f32_16x16x16_bf16 {v(vOE,4)}, {v(vX,2)}, {v(vPP+4,2)}, {v(vOE,4)}")
    A(f"v_mfma_f32_16x16x16_bf16 {v(vOO,4)}, {v(vZ,2)}, {v(vPP+4,2)}, {v(vOO,4)}")
    for i in range(1, 6):
        A(f"v_add_f32 v{vT+i}, v{vSS+2*i}, v{vSS+2*i+1}")
    A(f"v_add_f32 v{vT}, v{vT}, v{vT+1}", f"v_add_f32 v{vT+2}, v{vT+2}, v{vT+3}", f"v_add_f32 v{vT+4}, v{vT+4}, v{vT+5}")
    A(f"v_add_f32 v{vT}, v{vT}, v{vT+2}", f"v_add_f32 v{vT}, v{vT}, v{vT+4}")
    A(f"v_mov_b32 v{vT+1}, v{vT}", "s_nop 1", f"v_permlane16_swap_b32 v{vT}, v{vT+1}", f"v_add_f32 v{vT}, v{vT}, v{vT+1}")
    A(f"v_mov_b32 v{vT+1}, v{vT}", "s_nop 1", f"v_permlane32_swap_b32 v{vT}, v{vT+1}", f"v_add_f32 v{vT}, v{vT}, v{vT+1}")
    A(f"v_rcp_f32 v{vT}, v{vT}", "s_nop 0")
    for i in range(4):
        A(f"v_mul_f32 v{vOE+i}, v{vOE+i}, v{vT}", f"v_mul_f32 v{vOO+i}, v{vOO+i}, v{vT}")
    for i in range(4):
        A(f"v_cvt_pk_bf16_f32 v{vS+i}, v{vOE+i}, v{vOO+i}")
    A(f"s_mov_b64 exec, s[{sJ8}:{sJ8+1}]")
    for i in range(4):
        A(f"v_min_u32 v{vS+i}, -2, v{vS+i}")
    A(f"buffer_store_dwordx4 {v(vS,4)}, v{vR2aSt}, s[{sWS}:{sWS+3}], s{sSlot} offen")
    A("s_mov_b64 exec, -1")
    A(f"buffer_store_dwordx2 {v(vXS,2)}, v{vVMst}, s[{sWS}:{sWS+3}], s{sEXP} offen")
    A.label(lJoin4)
    A("s_barrier")
    stamp(5)
    lR2a = A.newlabel("Lr2a")
    A(f"s_add_u32 s{sKX}, s{sKX}, {32*8192}", f"s_add_u32 s{sVT}, s{sVT}, 64", f"s_add_u32 s{sEXP}, s{sEXP}, 65536")
    for i in range(4):
        A(f"v_mov_b32 v{vWE+i}, 0", f"v_mov_b32 v{vWO_+i}, 0")
    def r2a_loads():
        for bb in range(4):
            A(f"buffer_load_dwordx4 {v(vP+4*bb,4)}, v{vR2aLd}, s[{sWS}:{sWS+3}], s{sSlot} offen offset:{bb*1024} sc1")
    sleep(D_R2A)
    r2a_loads()
    sleep(D_GAP)
    A.label(lR2a)
    r2a_loads()
    A("s_waitcnt vmcnt(4)")
    r = maxtree_u32(list(range(vP, vP + 16)), None, list(range(vT, vT + 16)))
    A(f"v_cmp_eq_u32 vcc, -1, v{r}")
    masked_retry(lR2a)
    stamp(6)
    for bb in range(4):
        A(f"v_smfmac_f32_16x16x64_bf16 {v(vWE,4)}, {v(vP+4*bb,4)}, {a(aWO+8*bb,8)}, v{vIdx}")
        A(f"v_smfmac_f32_16x16x64_bf16 {v(vWO_,4)}, {v(vP+4*bb,4)}, {a(aWO+32+8*bb,8)}, v{vIdx}")
    A.nop(8)
    for i in range(4):
        A(f"v_permlane32_swap_b32 v{vWE+i}, v{vWO_+i}")
    for i in range(4):
        A(f"v_add_f32 v{vWE+i}, v{vWE+i}, v{vWO_+i}")
    A(f"ds_write_b128 v{vLwoW}, {v(vWE,4)}")
    A("s_waitcnt lgkmcnt(0)", "s_barrier")
    stamp(7)
    lJoin6 = A.newlabel("Ljoin6"); lR2b = A.newlabel("Lr2b")
    lW0 = A.newlabel("Lw0"); lW1 = A.newlabel("Lw1"); lW2 = A.newlabel("Lw2")
    def warm_v(lo, hi):
        A(f"s_and_b32 s{sT0}, s{sS}, 1", f"s_lshl_b32 s{sT0}, s{sT0}, 16", f"s_lshr_b32 s{sT1}, s{sS}, 1", f"s_lshl_b32 s{sT1}, s{sT1}, 7", f"s_add_u32 s{sT0}, s{sT0}, s{sT1}")
        A(f"s_add_u32 s{sT0}, s{sPfV}, s{sT0}")
        for i in range(lo, hi):
            A(f"s_buffer_load_dwordx2 s[92:93], s[{sWS}:{sWS+3}], s{sT0} offset:{i*4096+60}")
    def wo_reduce():
        for k in range(4):
            A(f"ds_read_b128 {v(vT+4*k,4)}, v{vL16} offset:{L_WO + k*1024}")
        A("s_waitcnt lgkmcnt(0)")
        for i in range(4):
            A(f"v_add_f32 v{vWE+i}, v{vT+i}, v{vT+4+i}", f"v_add_f32 v{vT+8+i}, v{vT+8+i}, v{vT+12+i}")
        for i in range(4):
            A(f"v_add_f32 v{vWE+i}, v{vWE+i}, v{vT+8+i}")
    A(f"s_lshr_b32 s{sT3}, s{sSlot}, 1")
    A(f"s_cmp_eq_u32 s{sW}, 0", f"s_cbranch_scc1 {lW0}")
    A(f"s_cmp_eq_u32 s{sW}, 1", f"s_cbranch_scc1 {lW1}")
    A(f"s_cmp_eq_u32 s{sW}, 2", f"s_cbranch_scc1 {lW2}")
    warm_v(10, 16)
    A(f"s_mov_b64 exec, s[{sJ8}:{sJ8+1}]")
    A(f"buffer_store_dwordx4 {v(vPOIS,4)}, v{vR2aSt}, s[{sWS}:{sWS+3}], s{sOld} offen")
    A(f"s_mov_b64 exec, s[{sJ10}:{sJ10+1}]")
    A(f"buffer_store_dword v{vPOIS}, v{vR2cSt}, s[{sWS}:{sWS+3}], s{sOld} offen")
    A(f"buffer_store_dword v{vPOIS}, v{vR2cSt}, s[{sWS}:{sWS+3}], s{sOld} offen offset:32")
    A("s_mov_b64 exec, -1")
    A(f"s_branch {lJoin6}")
    A.label(lW2)
    warm_v(5, 10)
    A(f"s_lshr_b32 s{sT3}, s{sOld}, 1")
    A(f"s_mov_b64 exec, s[{sJ10}:{sJ10+1}]")
    A(f"buffer_store_dwordx4 {v(vPOIS,4)}, v{vR2bSt}, s[{sWS}:{sWS+3}], s{sT3} offen sc1")
    A(f"s_mov_b64 exec, s[{sJ8}:{sJ8+1}]")
    A(f"v_subrev_u32 v{vT}, 1024, v{vR1St}")
    for t in range(3):
        A(f"buffer_store_dwordx4 {v(vPOIS,4)}, v{vT}, s[{sWS}:{sWS+3}], s{sOld} offen offset:{t*512}")
    A("s_mov_b64 exec, -1")
    A(f"s_branch {lJoin6}")
    A.label(lW1)
    wo_reduce()
    A(f"s_mov_b64 exec, s[{sJ10}:{sJ10+1}]")
    for i in range(4):
        A(f"v_min_u32 v{vWE+i}, -2, v{vWE+i}")
    A(f"buffer_store_dwordx4 {v(vWE,4)}, v{vR2bSt}, s[{sWS}:{sWS+3}], s{sT3} offen sc1")
    A("s_mov_b64 exec, -1")
    warm_v(0, 5)
    A(f"s_branch {lJoin6}")
    A.label(lW0)
    A(f"s_add_u32 s{sT0}, s{sT3}, s{sB1}", f"s_add_u32 s{sT1}, s{sT3}, s{sB2}", f"s_add_u32 s{sT2}, s{sT3}, s{sB3}")
    wo_reduce()
    def r2b_loads():
        for k, sb in enumerate((sT0, sT1, sT2)):
            A(f"buffer_load_dwordx4 {v(vP+4*k,4)}, v{vR2bLd}, s[{sWS}:{sWS+3}], s{sb} offen sc1")
    sleep(D_R2B)
    r2b_loads()
    sleep(D_GAP)
    r2b_loads()
    sleep(D_GAP)
    A.label(lR2b)
    r2b_loads()
    A("s_waitcnt vmcnt(6)")
    r = maxtree_u32(list(range(vP, vP + 12)), None, list(range(vT, vT + 16)))
    A(f"v_cmp_eq_u32 vcc, -1, v{r}")
    masked_retry(lR2b)
    stamp(8)
    for i in range(4):
        A(f"v_add_f32 v{vS+i}, v{vWE+i}, v{vP+i}", f"v_add_f32 v{vT+4+i}, v{vP+4+i}, v{vP+8+i}")
    for i in range(4):
        A(f"v_add_f32 v{vS+i}, v{vS+i}, v{vT+4+i}")
    A("s_nop 1")
    A(f"v_permlane32_swap_b32 v{vS}, v{vS+1}", f"v_permlane32_swap_b32 v{vS+2}, v{vS+3}")
    A(f"v_cvt_pk_bf16_f32 v{vT}, v{vS}, v{vS+1}", f"v_cvt_pk_bf16_f32 v{vT+1}, v{vS+2}, v{vS+3}")
    A(f"s_mov_b64 exec, s[{sJ10}:{sJ10+1}]")
    A(f"v_min_u32 v{vT}, -2, v{vT}", f"v_min_u32 v{vT+1}, -2, v{vT+1}")
    A(f"buffer_store_dword v{vT}, v{vR2cSt}, s[{sWS}:{sWS+3}], s{sSlot} offen")
    A(f"buffer_store_dword v{vT+1}, v{vR2cSt}, s[{sWS}:{sWS+3}], s{sSlot} offen offset:32")
    A("s_mov_b64 exec, -1")
    A.label(lJoin6)
    A("s_barrier")
    stamp(9)
    lR2c = A.newlabel("Lr2c")
    def r2c_loads():
        for bb in range(3):
            A(f"buffer_load_dwordx4 {v(vP+4*bb,4)}, v{vR2cLd}, s[{sWS}:{sWS+3}], s{sSlot} offen offset:{bb*1024} sc1")
    sleep(D_R2C)
    r2c_loads()
    sleep(D_GAP)
    A.label(lR2c)
    r2c_loads()
    A("s_waitcnt vmcnt(3)")
    r = maxtree_u32(list(range(vP, vP + 12)), None, list(range(vT, vT + 16)))
    A(f"v_cmp_eq_u32 vcc, -1, v{r}")
    masked_retry(lR2c)
    stamp(10)
    A(f"s_add_u32 s{sS}, s{sS}, 1")
    A(f"s_add_u32 s{sSlot}, s{sSlot}, {SLOT}", f"s_and_b32 s{sSlot}, s{sSlot}, {NSLOT*SLOT-1}")
    A(f"s_add_u32 s{sOld}, s{sOld}, {SLOT}", f"s_and_b32 s{sOld}, s{sOld}, {NSLOT*SLOT-1}")
    A(f"s_branch {LOOP}")
    for ri, (stub, target) in enumerate(retry_stubs):
        A.label(stub)
        if prof: A(f"s_add_u32 s{76+ri}, s{76+ri}, 1")
        A("s_mov_b64 exec, vcc")
        A(f"s_add_u32 s{sGuard}, s{sGuard}, 1", f"s_cmp_lt_u32 s{sGuard}, 0x40000", f"s_cbranch_scc1 {target}", f"s_branch {lexit}")
    A.label(lDoneW3)
    A(f"buffer_store_dwordx2 {v(vXS,2)}, v{vVMst}, s[{sWS}:{sWS+3}], s{sEXP} offen")
    A.label(lDone)
    if timing:
        lnt = A.newlabel("Lnt")
        A(f"s_memrealtime s[{sTm0+2}:{sTm0+3}]", "s_waitcnt lgkmcnt(0)")
        A(f"s_or_b32 s{sT0}, s{sX}, s{sR}", f"s_or_b32 s{sT0}, s{sT0}, s{sW}", f"s_cmp_lg_u32 s{sT0}, 0", f"s_cbranch_scc1 {lnt}")
        srd(A, sT, 60, 256)
        A(f"s_sub_u32 s{sT0}, s{sTm0+2}, s{sTm0}", f"v_mov_b32 v{vTmpA}, s{sT0}", f"v_mov_b32 v{vTmpB}, 68")
        A("s_mov_b64 exec, 1")
        A(f"buffer_store_dword v{vTmpA}, v{vTmpB}, s[{sT}:{sT+3}], 0 offen")
        A.label(lnt)
    if prof:
        lnp = A.newlabel("Lnp")
        A(f"s_or_b32 s{sT0}, s{sX}, s{sR}", f"s_cmp_lg_u32 s{sT0}, 0", f"s_cbranch_scc1 {lnp}")
        A(f"s_cmp_eq_u32 s{sW}, 1", f"s_cbranch_scc1 {lnp}", f"s_cmp_eq_u32 s{sW}, 2", f"s_cbranch_scc1 {lnp}")
        srd(A, sT, 60, 256)
        A(f"s_lshr_b32 s{sT0}, s{sW}, 1", f"s_lshl_b32 s{sT0}, s{sT0}, 6", f"s_add_u32 s{sT0}, s{sT0}, 128", f"v_mov_b32 v{vTmpB}, s{sT0}")
        A("s_mov_b64 exec, 1")
        for k in range(16):
            A(f"v_mov_b32 v{vTmpA}, s{64+k}", f"buffer_store_dword v{vTmpA}, v{vTmpB}, s[{sT}:{sT+3}], 0 offen offset:{4*k}", "s_nop 1")
        A.label(lnp)
    A.label(lexit)
    A("s_waitcnt vmcnt(0)")
    A("s_endpgm")
    return kernel_desc(name, 256 + NA, 102, 256)

def gen_init(A, name):
    kernel_begin(A, name)
    nwg = (3 * MiB) // 4096
    A(f"s_load_dwordx2 s[4:5], s[0:1], {KA['ws']}")
    A(f"s_cmp_ge_u32 s2, {nwg}", f"s_cbranch_scc1 {name}_exit")
    A("s_waitcnt lgkmcnt(0)")
    srd(A, 8, 4, WS_BYTES)
    A("s_lshl_b32 s3, s2, 12", f"s_add_u32 s3, s3, {WS_RING}", "v_lshlrev_b32 v1, 4, v0")
    for i in range(4):
        A(f"v_mov_b32 v{4+i}, -1")
    A("buffer_store_dwordx4 v[4:7], v1, s[8:11], s3 offen")
    A.label(f"{name}_exit")
    A("s_endpgm")
    return kernel_desc(name, 8, 16), nwg
```

```python
from asmgen import *

NST = 3
STG = 32768

class GemmRegs:
    def __init__(self, vb, sb):
        self.vAsrc0 = vb + 0
        self.vAsrc1 = vb + 1
        self.vBsrc = vb + 2
        self.vArd = vb + 3
        self.vBrd = vb + 7
        self.vArdS = vb + 9
        self.vBrdS = vb + 13
        self.vT = vb + 15
        base = (vb + 20 + 3) // 4 * 4
        self.vFA = base
        self.vFB = base + 16
        self.vAcc = base + 32
        self.vEnd = base + 96
        self.sA = sb
        self.sB = sb + 4
        self.sAoff = sb + 8
        self.sBoff = sb + 9
        self.sK = sb + 10
        self.sLd = sb + 11
        self.sRd = sb + 12
        self.sT = sb + 13
        self.sEnd = sb + 16

def gemm_setup(A, R, vL, sW, lda, ldb, ldsbase=0):
    T = R.vT
    A(f"v_lshrrev_b32 v{T}, 3, v{vL}", f"s_lshl_b32 s{R.sT}, s{sW}, 5", f"v_add_u32 v{T}, s{R.sT}, v{T}")
    A(f"s_mov_b32 s{R.sT+1}, {lda}", f"v_mul_lo_u32 v{T}, v{T}, s{R.sT+1}")
    A(f"v_and_b32 v{T+1}, 7, v{vL}", f"v_lshrrev_b32 v{T+2}, 4, v{vL}", f"v_xor_b32 v{T+1}, v{T+1}, v{T+2}")
    A(f"v_lshl_add_u32 v{R.vAsrc0}, v{T+1}, 4, v{T}", f"v_xor_b32 v{T+1}, 4, v{T+1}", f"v_lshl_add_u32 v{R.vAsrc1}, v{T+1}, 4, v{T}")
    A(f"s_lshl_b32 s{R.sT}, s{sW}, 4", f"v_add_u32 v{T}, s{R.sT}, v{T+2}", f"s_mov_b32 s{R.sT+1}, {ldb}", f"v_mul_lo_u32 v{T}, v{T}, s{R.sT+1}")
    A(f"v_bfe_u32 v{T+1}, v{vL}, 2, 2", f"v_xor_b32 v{T+1}, v{T+1}, v{T+2}", f"v_lshl_add_u32 v{T}, v{T+1}, 6, v{T}")
    A(f"v_and_b32 v{T+1}, 3, v{vL}", f"v_lshl_add_u32 v{R.vBsrc}, v{T+1}, 4, v{T}")
    A(f"v_and_b32 v{T}, 31, v{vL}", f"v_bfe_u32 v{T+1}, v{vL}, 1, 3", f"v_lshrrev_b32 v{T+2}, 5, v{vL}", f"v_xor_b32 v{T+1}, v{T+1}, v{T+2}")
    A(f"s_lshr_b32 s{R.sT}, s{sW}, 1", f"s_lshl_b32 s{R.sT}, s{R.sT}, 13", f"s_add_u32 s{R.sT}, s{R.sT}, {ldsbase}")
    A(f"v_lshlrev_b32 v{T}, 7, v{T}", f"v_add_u32 v{T}, s{R.sT}, v{T}")
    for ks in range(4):
        A(f"v_xor_b32 v{T+2}, {2*ks}, v{T+1}", f"v_lshl_add_u32 v{R.vArd+ks}, v{T+2}, 4, v{T}")
    A(f"v_lshrrev_b32 v{T}, 5, v{vL}", f"v_lshlrev_b32 v{T}, 3, v{T}", f"v_bfe_u32 v{T+1}, v{vL}, 2, 2", f"v_add_u32 v{T}, v{T}, v{T+1}", f"v_lshlrev_b32 v{T}, 8, v{T}")
    A(f"v_bfe_u32 v{T+2}, v{vL}, 4, 1", f"v_lshl_add_u32 v{T}, v{T+2}, 5, v{T}", f"v_and_b32 v{T+2}, 3, v{vL}", f"v_lshl_add_u32 v{T}, v{T+2}, 3, v{T}")
    A(f"v_add_u32 v{T}, {16384 + ldsbase}, v{T}")
    A(f"s_and_b32 s{R.sT}, s{sW}, 1", f"s_lshl_b32 s{R.sT}, s{R.sT}, 1")
    for t in range(2):
        A(f"s_add_u32 s{R.sT+1}, s{R.sT}, {t}", f"v_xor_b32 v{T+2}, s{R.sT+1}, v{T+1}", f"v_lshl_add_u32 v{R.vBrd+t}, v{T+2}, 6, v{T}")

def gemm_issue_stage(A, R, sW, lda, ldb, ldsbase=0):
    A(f"s_lshl_b32 s{R.sT}, s{sW}, 12", f"s_add_u32 s{R.sT}, s{R.sT}, s{R.sLd}")
    for qq in range(4):
        A(f"s_add_u32 m0, s{R.sT}, {ldsbase + qq*1024}", f"s_add_u32 s{R.sT+1}, s{R.sAoff}, {qq*8*lda}")
        A(f"buffer_load_dwordx4 v{R.vAsrc1 if qq & 1 else R.vAsrc0}, s[{R.sA}:{R.sA+3}], s{R.sT+1} offen lds")
    for qq in range(4):
        A(f"s_add_u32 m0, s{R.sT}, {ldsbase + 16384 + qq*1024}", f"s_add_u32 s{R.sT+1}, s{R.sBoff}, {qq*4*ldb}")
        A(f"buffer_load_dwordx4 v{R.vBsrc}, s[{R.sB}:{R.sB+3}], s{R.sT+1} offen lds")
    A(f"s_add_u32 s{R.sAoff}, s{R.sAoff}, 128", f"s_add_u32 s{R.sBoff}, s{R.sBoff}, {64*ldb}")
    A(f"s_add_u32 s{R.sLd}, s{R.sLd}, {STG}", f"s_cmp_eq_u32 s{R.sLd}, {NST*STG}", f"s_cselect_b32 s{R.sLd}, 0, s{R.sLd}")

def gemm_mainloop(A, R, sW, lda, ldb, nstages, swap, ldsbase=0):
    for i in range(64):
        A(f"v_mov_b32 v{R.vAcc+i}, 0")
    A(f"s_mov_b32 s{R.sLd}, 0", f"s_mov_b32 s{R.sRd}, 0", f"s_mov_b32 s{R.sK}, {nstages}")
    A("s_barrier")
    PRE = NST - 1
    for _ in range(PRE):
        gemm_issue_stage(A, R, sW, lda, ldb, ldsbase)
    L = A.newlabel("Lg"); Lno = A.newlabel("Lgn"); Lw2 = A.newlabel("Lgw2")
    A.label(L)
    for rem in range(1, PRE):
        Lx = A.newlabel("Lgx")
        A(f"s_cmp_lg_u32 s{R.sK}, {rem}", f"s_cbranch_scc1 {Lx}")
        A(f"s_waitcnt vmcnt({8*(rem-1)})", f"s_branch {Lw2}")
        A.label(Lx)
    A(f"s_waitcnt vmcnt({8*(PRE-1)})")
    A.label(Lw2)
    A("s_barrier")
    for ks in range(4):
        A(f"v_add_u32 v{R.vArdS+ks}, s{R.sRd}, v{R.vArd+ks}")
    for t in range(2):
        A(f"v_add_u32 v{R.vBrdS+t}, s{R.sRd}, v{R.vBrd+t}")
    def rd(ks):
        b = ks & 1
        for t in range(2):
            A(f"ds_read_b128 {v(R.vFA + b*8 + t*4, 4)}, v{R.vArdS+ks} offset:{t*4096}")
        for t in range(2):
            for q4 in range(2):
                A(f"ds_read_b64_tr_b16 {v(R.vFB + b*8 + t*4 + q4*2, 2)}, v{R.vBrdS+t} offset:{(16*ks+4*q4)*256}")
    rd(0)
    A(f"s_cmp_le_u32 s{R.sK}, {PRE}", f"s_cbranch_scc1 {Lno}")
    gemm_issue_stage(A, R, sW, lda, ldb, ldsbase)
    A.label(Lno)
    for ks in range(4):
        if ks < 3:
            rd(ks + 1)
            A("s_waitcnt lgkmcnt(6)")
        else:
            A("s_waitcnt lgkmcnt(0)")
        b = ks & 1
        for ta in range(2):
            for tb in range(2):
                fa = v(R.vFA + b*8 + ta*4, 4); fb = v(R.vFB + b*8 + tb*4, 4)
                acc = v(R.vAcc + 16*(2*ta+tb), 16)
                if swap:
                    A(f"v_mfma_f32_32x32x16_bf16 {acc}, {fb}, {fa}, {acc}")
                else:
                    A(f"v_mfma_f32_32x32x16_bf16 {acc}, {fa}, {fb}, {acc}")
    A(f"s_add_u32 s{R.sRd}, s{R.sRd}, {STG}", f"s_cmp_eq_u32 s{R.sRd}, {NST*STG}", f"s_cselect_b32 s{R.sRd}, 0, s{R.sRd}")
    A(f"s_sub_u32 s{R.sK}, s{R.sK}, 1", f"s_cmp_lg_u32 s{R.sK}, 0", f"s_cbranch_scc1 {L}")
    A.nop(16)

def epilogue_bf16(A, R, vL, sOut, sOoff, ldo, tile_off, flags=""):
    vO = R.vT + 4
    for ta in range(2):
        for tb in range(2):
            acc = R.vAcc + 16*(2*ta+tb)
            ro, co = tile_off(ta, tb)
            F = R.vFA + (2*ta+tb) * 8
            for g in range(4):
                A(f"v_cvt_pk_bf16_f32 v{F+2*g}, v{acc+4*g}, v{acc+4*g+1}", f"v_cvt_pk_bf16_f32 v{F+2*g+1}, v{acc+4*g+2}, v{acc+4*g+3}")
            A("s_nop 1")
            for p in range(2):
                A(f"v_permlane32_swap_b32 v{F+4*p}, v{F+4*p+2}", f"v_permlane32_swap_b32 v{F+4*p+1}, v{F+4*p+3}")
            for p in range(2):
                off = ro * ldo + co * 2 + p * 32
                A(f"s_add_u32 s{R.sT}, s{sOoff}, {off}")
                A(f"buffer_store_dwordx4 {v(F+4*p,4)}, v{vO}, s[{sOut}:{sOut+3}], s{R.sT} offen {flags}")

def gen_qkv(A, name):
    kernel_begin(A, name)
    R = GemmRegs(2, 16)
    sW = 12; vL = 1
    A(f"s_cmp_ge_u32 s2, {16*96}", f"s_cbranch_scc1 {name}_exit")
    A("s_load_dwordx16 s[32:47], s[0:1], 0", f"s_load_dwordx2 s[48:49], s[0:1], {KA['ws']}")
    A(f"v_lshrrev_b32 v{R.vT}, 6, v0", f"v_and_b32 v{vL}, 63, v0", "s_nop 0", f"v_readfirstlane_b32 s{sW}, v{R.vT}")
    A("s_waitcnt lgkmcnt(0)")
    srd(A, 4, 48, WS_BYTES)
    srd(A, R.sA, 32, 2048*640*2)
    gemm_setup(A, R, vL, sW, 1280, 8192)
    A("s_and_b32 s50, s2, 7", "s_lshr_b32 s51, s2, 3", "s_and_b32 s13, s51, 15", "s_lshr_b32 s14, s51, 4", "s_mul_i32 s50, s50, 12", "s_add_u32 s14, s14, s50")
    A("s_lshr_b32 s15, s14, 5", "s_and_b32 s14, s14, 31")
    A("s_cmp_eq_u32 s15, 0", "s_cselect_b32 s50, s36, s38", "s_cselect_b32 s51, s37, s39")
    A("s_cmp_eq_u32 s15, 2", "s_cselect_b32 s50, s40, s50", "s_cselect_b32 s51, s41, s51")
    srd(A, R.sB, 50, 640*4096*2)
    A(f"s_mul_i32 s{R.sAoff}, s13, {128*1280}", f"s_lshl_b32 s{R.sBoff}, s14, 8")
    lv = name + "_v"; lend = name + "_exit"
    A("s_lshr_b32 s52, s12, 1", "s_and_b32 s53, s12, 1")
    A(f"v_and_b32 v{R.vT}, 31, v{vL}", f"v_lshrrev_b32 v{R.vT+1}, 5, v{vL}", f"v_lshlrev_b32 v{R.vT+1}, 4, v{R.vT+1}")
    A("s_cmp_eq_u32 s15, 2", f"s_cbranch_scc1 {lv}")
    A(f"v_lshl_add_u32 v{R.vT+4}, v{R.vT}, 13, v{R.vT+1}")
    A("s_cmp_eq_u32 s15, 0", f"s_mov_b32 s54, {WS_Q}", f"s_cselect_b32 s54, s54, {WS_KX}")
    A("s_lshl_b32 s55, s13, 1", "s_add_u32 s55, s55, s52", "s_lshl_b32 s55, s55, 19", "s_add_u32 s54, s54, s55")
    A("s_lshl_b32 s55, s14, 1", "s_add_u32 s55, s55, s53", "s_lshl_b32 s55, s55, 7", "s_add_u32 s54, s54, s55")
    gemm_mainloop(A, R, sW, 1280, 8192, 10, True)
    epilogue_bf16(A, R, vL, 4, 54, 8192, lambda ta, tb: (32*ta, 32*tb))
    A(f"s_branch {lend}")
    A.label(lv)
    A(f"v_lshl_add_u32 v{R.vT+4}, v{R.vT}, 12, v{R.vT+1}")
    A("s_lshl_b32 s55, s14, 1", "s_add_u32 s55, s55, s53", "s_lshl_b32 s55, s55, 18", f"s_add_u32 s54, s55, {WS_VT}")
    A("s_lshl_b32 s55, s13, 1", "s_add_u32 s55, s55, s52", "s_lshl_b32 s55, s55, 7", "s_add_u32 s54, s54, s55")
    gemm_mainloop(A, R, sW, 1280, 8192, 10, False)
    epilogue_bf16(A, R, vL, 4, 54, 4096, lambda ta, tb: (32*tb, 32*ta))
    A.label(lend)
    A("s_endpgm")
    return kernel_desc(name, R.vEnd, 102)
```

```python
from asmgen import *
import gemm, math, struct
def f32bits(x):
    return struct.unpack("<I", struct.pack("<f", x))[0]
KSPLIT = 4
WS_PART = 104 * MiB
PART_STRIDE = 2048 * 640 * 4

def epilogue_f32(A, R, sOut, sOoff, ldo, flags=""):
    vO = R.vT + 4
    for ta in range(2):
        A(f"s_add_u32 s{R.sT}, s{sOoff}, {32*ta*ldo}")
        for tb in range(2):
            acc = R.vAcc + 16*(2*ta+tb)
            for a_ in range(4):
                A(f"buffer_store_dwordx4 {v(acc+4*a_,4)}, v{vO}, s[{sOut}:{sOut+3}], s{R.sT} offen offset:{(32*tb+8*a_)*4} {flags}")

def gen_outproj(A, name):
    kernel_begin(A, name)
    R = gemm.GemmRegs(2, 16)
    sW = 12; vL = 1
    ntask = 16 * 5 * KSPLIT
    A(f"s_cmp_ge_u32 s2, {ntask}", f"s_cbranch_scc1 {name}_exit")
    A(f"s_load_dwordx2 s[40:41], s[0:1], {KA['Wo']}", f"s_load_dwordx2 s[48:49], s[0:1], {KA['ws']}")
    A(f"v_lshrrev_b32 v{R.vT}, 6, v0", f"v_and_b32 v{vL}, 63, v0", "s_nop 0", f"v_readfirstlane_b32 s{sW}, v{R.vT}")
    A("s_waitcnt lgkmcnt(0)")
    srd(A, 4, 48, WS_BYTES)
    srd(A, R.sA, 48, WS_BYTES)
    srd(A, R.sB, 40, 4096*640*2)
    gemm.gemm_setup(A, R, vL, sW, 8192, 1280)
    A("s_and_b32 s13, s2, 15", "s_lshr_b32 s14, s2, 4", f"s_and_b32 s15, s14, {KSPLIT-1}", f"s_lshr_b32 s14, s14, {int(math.log2(KSPLIT))}")
    KC = 4096 // KSPLIT
    A(f"s_lshl_b32 s{R.sAoff}, s13, 20", f"s_mul_i32 s50, s15, {KC*2}", f"s_add_u32 s{R.sAoff}, s{R.sAoff}, s50", f"s_add_u32 s{R.sAoff}, s{R.sAoff}, {WS_O}")
    A(f"s_mul_i32 s{R.sBoff}, s15, {KC*1280}", "s_lshl_b32 s50, s14, 8", f"s_add_u32 s{R.sBoff}, s{R.sBoff}, s50")
    A("s_lshr_b32 s52, s12, 1", "s_and_b32 s53, s12, 1")
    A(f"v_and_b32 v{R.vT}, 31, v{vL}", f"v_lshrrev_b32 v{R.vT+1}, 5, v{vL}", f"v_lshlrev_b32 v{R.vT+1}, 4, v{R.vT+1}")
    A(f"v_mul_u32_u24 v{R.vT}, 2560, v{R.vT}", f"v_add_u32 v{R.vT+4}, v{R.vT}, v{R.vT+1}")
    A(f"s_mul_i32 s54, s15, {PART_STRIDE}", f"s_add_u32 s54, s54, {WS_PART}")
    A("s_lshl_b32 s55, s13, 1", "s_add_u32 s55, s55, s52", f"s_mul_i32 s55, s55, {64*2560}", "s_add_u32 s54, s54, s55")
    A("s_lshl_b32 s55, s14, 1", "s_add_u32 s55, s55, s53", "s_lshl_b32 s55, s55, 8", "s_add_u32 s54, s54, s55")
    gemm.gemm_mainloop(A, R, sW, 8192, 1280, KC // 64, True)
    epilogue_f32(A, R, 4, 54, 2560)
    A.label(f"{name}_exit")
    A("s_endpgm")
    return kernel_desc(name, R.vEnd, 102), ntask

def combine_rows(A, vL, vb, sTok, sX, sGW, sWS, sOut, sT, ldflags=""):
    V = vb
    vO4, vO8 = V, V + 1
    X = V + 2; G = V + 7; Y = V + 12; P = V + 18
    T = P + 10 * KSPLIT
    A(f"v_lshlrev_b32 v{vO4}, 2, v{vL}", f"v_lshlrev_b32 v{vO8}, 3, v{vL}")
    A(f"s_mul_i32 s{sT}, s{sTok}, 1280", f"s_add_u32 s{sT+1}, s{sT}, {WS_Y}", f"s_lshl_b32 s{sT+2}, s{sT}, 1", f"s_add_u32 s{sT+2}, s{sT+2}, {WS_PART}")
    for k in range(5):
        A(f"buffer_load_dword v{X+k}, v{vO4}, s[{sX}:{sX+3}], s{sT} offen offset:{k*256}")
        A(f"buffer_load_dword v{G+k}, v{vO4}, s[{sGW}:{sGW+3}], 0 offen offset:{k*256}")
    for k in range(5):
        A(f"buffer_load_dword v{Y+k}, v{vO4}, s[{sWS}:{sWS+3}], s{sT+1} offen offset:{k*256} {ldflags}")
    for ks in range(KSPLIT):
        A(f"s_add_u32 s{sT+3}, s{sT+2}, {ks*PART_STRIDE}")
        for k in range(5):
            A(f"buffer_load_dwordx2 {v(P+10*ks+2*k,2)}, v{vO8}, s[{sWS}:{sWS+3}], s{sT+3} offen offset:{k*512} {ldflags}")
    A(f"s_waitcnt vmcnt({5 + 5*KSPLIT})")
    A(f"v_mov_b32 v{T+6}, 0")
    for k in range(5):
        A(f"v_lshlrev_b32 v{T}, 16, v{X+k}", f"v_and_b32 v{T+1}, 0xffff0000, v{X+k}", f"v_lshlrev_b32 v{T+2}, 16, v{G+k}", f"v_and_b32 v{T+3}, 0xffff0000, v{G+k}")
        A(f"v_mul_f32 v{T}, v{T}, v{T+2}", f"v_mul_f32 v{T+1}, v{T+1}, v{T+3}", f"v_cvt_pk_bf16_f32 v{T+2}, v{T}, v{T+1}")
        A(f"v_lshlrev_b32 v{T}, 16, v{T+2}", f"v_and_b32 v{T+1}, 0xffff0000, v{T+2}", f"v_add_f32 v{T+6}, v{T+6}, v{T}", f"v_add_f32 v{T+6}, v{T+6}, v{T+1}")
    s_ = T + 6
    A("s_nop 1")
    for sh in (1, 2, 4, 8):
        A(f"v_add_f32_dpp v{s_}, v{s_}, v{s_} row_ror:{sh} row_mask:0xf bank_mask:0xf", "s_nop 1")
    A(f"v_mov_b32 v{T}, v{s_}", "s_nop 1", f"v_permlane16_swap_b32 v{s_}, v{T}", f"v_add_f32 v{s_}, v{s_}, v{T}")
    A(f"v_mov_b32 v{T}, v{s_}", "s_nop 1", f"v_permlane32_swap_b32 v{s_}, v{T}", f"v_add_f32 v{s_}, v{s_}, v{T}")
    A(f"v_cvt_pk_bf16_f32 v{s_}, v{s_}, v{s_}", f"v_lshlrev_b32 v{s_}, 16, v{s_}")
    A(f"v_mul_f32 v{s_}, {f32bits(-math.log2(math.e)):#x}, v{s_}", f"v_exp_f32 v{s_}, v{s_}", "s_nop 0", f"v_add_f32 v{s_}, 1.0, v{s_}", f"v_rcp_f32 v{s_}, v{s_}", "s_nop 0")
    A(f"v_cvt_pk_bf16_f32 v{s_}, v{s_}, v{s_}", f"v_lshlrev_b32 v{s_}, 16, v{s_}")
    A(f"v_sub_f32 v{T+7}, 1.0, v{s_}", f"v_cvt_pk_bf16_f32 v{T+7}, v{T+7}, v{T+7}", f"v_lshlrev_b32 v{T+7}, 16, v{T+7}")
    A("s_waitcnt vmcnt(0)")
    for k in range(5):
        for j in range(2):
            A(f"v_add_f32 v{T+j}, v{P+2*k+j}, v{P+10+2*k+j}")
            for ks in range(2, KSPLIT):
                A(f"v_add_f32 v{T+j}, v{T+j}, v{P+10*ks+2*k+j}")
        A(f"v_cvt_pk_bf16_f32 v{T+2}, v{T}, v{T+1}", f"v_lshlrev_b32 v{T}, 16, v{T+2}", f"v_and_b32 v{T+1}, 0xffff0000, v{T+2}")
        A(f"v_mul_f32 v{T}, v{s_}, v{T}", f"v_mul_f32 v{T+1}, v{s_}, v{T+1}", f"v_cvt_pk_bf16_f32 v{T+2}, v{T}, v{T+1}")
        A(f"v_lshlrev_b32 v{T+3}, 16, v{Y+k}", f"v_and_b32 v{T+4}, 0xffff0000, v{Y+k}", f"v_mul_f32 v{T+3}, v{T+7}, v{T+3}", f"v_mul_f32 v{T+4}, v{T+7}, v{T+4}", f"v_cvt_pk_bf16_f32 v{T+5}, v{T+3}, v{T+4}")
        A(f"v_lshlrev_b32 v{T}, 16, v{T+2}", f"v_and_b32 v{T+1}, 0xffff0000, v{T+2}", f"v_lshlrev_b32 v{T+3}, 16, v{T+5}", f"v_and_b32 v{T+4}, 0xffff0000, v{T+5}")
        A(f"v_add_f32 v{T}, v{T}, v{T+3}", f"v_add_f32 v{T+1}, v{T+1}, v{T+4}", f"v_cvt_pk_bf16_f32 v{X+k}, v{T}, v{T+1}")
        A(f"buffer_store_dword v{X+k}, v{vO4}, s[{sOut}:{sOut+3}], s{sT} offen offset:{k*256}")
    return T + 8

def gen_combine(A, name):
    kernel_begin(A, name)
    A("s_cmp_ge_u32 s2, 512", f"s_cbranch_scc1 {name}_exit")
    A(f"s_load_dwordx2 s[40:41], s[0:1], {KA['x']}", f"s_load_dwordx8 s[44:51], s[0:1], {KA['gate']}")
    A("v_lshrrev_b32 v2, 6, v0", "v_and_b32 v1, 63, v0", "s_nop 0", "v_readfirstlane_b32 s12, v2")
    A("s_waitcnt lgkmcnt(0)")
    srd(A, 4, 50, WS_BYTES); srd(A, 16, 40, 2048*640*2); srd(A, 20, 44, 1280); srd(A, 24, 46, 2048*640*2)
    A("s_lshl_b32 s13, s2, 2", "s_add_u32 s13, s13, s12")
    end = combine_rows(A, 1, 2, 13, 16, 20, 4, 24, 28)
    A.label(f"{name}_exit")
    A("s_endpgm")
    return kernel_desc(name, end, 102)
```

```python
from asmgen import *
import math, struct
def f32bits(x):
    return struct.unpack("<I", struct.pack("<f", x))[0]

CPY = 4160
W_CPY = 0
W_U = 16640
W_TAB = W_U + 7600
WSZ = 25600
L_Y = 4 * WSZ
LDS_BYTES = L_Y + 16384

def offs_row(tile, i):
    if tile == 0: return (i & 7) + 128 * (i >> 3)
    if tile == 1:
        return 256 + 2 * (i & 3) + 128 * (i >> 2) if i < 8 else 512 + 4 * (i & 1) + 128 * ((i - 8) >> 1)
    return 1024 + 128 * i if i < 8 else 2048

class SsmRegs:
    def __init__(self, vb, sb):
        self.vT = vb
        b = (vb + 16 + 3) // 4 * 4
        self.vOff = b
        self.vTw = b + 4
        self.vPar = b + 16
        self.vD = b + 112
        self.vIdx = b + 124
        self.vAcc = b + 160
        self.vFA = b + 192
        self.vFB = b + 200
        self.vMisc = b + 216
        self.vEnd = b + 224
        self.sT = sb

def emit_table_const(A, dst, vals_fn, vSel, tmp, n):
    A(f"v_mov_b32 v{dst}, {vals_fn(0):#x}")
    for i in range(1, n):
        if vals_fn(i) == vals_fn(i - 1) and False:
            continue
        A(f"v_cmp_eq_u32 vcc, {i}, v{vSel}", f"v_mov_b32 v{tmp}, {vals_fn(i):#x}", "s_nop 0", f"v_cndmask_b32 v{dst}, v{dst}, v{tmp}, vcc")

def idx_of(A, vJ, dst, tmp):
    A(f"v_cvt_f32_u32 v{tmp}, v{vJ}", f"v_cvt_pk_bf16_f32 v{tmp}, v{tmp}, v{tmp}", f"v_and_b32 v{tmp}, 0xffff, v{tmp}",
      f"v_subrev_u32 v{tmp}, 0x4280, v{tmp}", f"v_cmp_gt_u32 vcc, 128, v{vJ}", "s_nop 1", f"v_cndmask_b32 v{dst}, v{tmp}, v{vJ}, vcc")

def ssm_setup(A, R, vL, sW):
    T = R.vT; S = R.sT
    A(f"s_mul_i32 s{S}, s{sW}, {WSZ}")
    A(f"v_and_b32 v{T}, 15, v{vL}", f"v_lshrrev_b32 v{T+1}, 4, v{vL}")
    for tile in range(3):
        emit_table_const(A, R.vOff + tile, lambda i: f32bits(float(offs_row(tile, i))), T, T + 2, 16)
    A(f"v_lshlrev_b32 v{T+2}, 3, v{T}", f"v_cvt_f32_u32 v{R.vOff+3}, v{T+2}")
    for tile in range(3):
        for r in range(4):
            emit_table_const(A, T + 3, lambda g: offs_row(tile, 4 * g + r), T + 1, T + 4, 4)
            A(f"v_add_u32 v{T+3}, v{T+3}, v{T+2}")
            idx_of(A, T + 3, T + 5, T + 4)
            if tile == 2:
                A(f"v_cmp_lt_u32 vcc, 2048, v{T+3}", f"v_mov_b32 v{T+4}, 645", "s_nop 0", f"v_cndmask_b32 v{T+5}, v{T+5}, v{T+4}, vcc")
            A(f"v_lshlrev_b32 v{T+5}, 1, v{T+5}", f"v_add_u32 v{T+5}, s{S}, v{T+5}", f"v_add_u32 v{R.vTw + 4*tile + r}, {W_TAB}, v{T+5}")
    for e in range(35):
        A(f"v_lshlrev_b32 v{T+3}, 5, v{vL}", f"v_sub_u32 v{T+3}, {2047 - e}, v{T+3}")
        A(f"v_max_i32 v{T+6}, 0, v{T+3}")
        idx_of(A, T + 6, T + 5, T + 4)
        A(f"v_cmp_gt_i32 vcc, 0, v{T+3}", f"v_mov_b32 v{T+4}, 644", "s_nop 0", f"v_cndmask_b32 v{T+5}, v{T+5}, v{T+4}, vcc")
        A(f"v_lshlrev_b32 v{T+5}, 1, v{T+5}", f"v_add_u32 v{T+5}, s{S}, v{T+5}", f"v_add_u32 v{R.vIdx + e}, {W_TAB}, v{T+5}")
    M = R.vMisc
    A(f"v_lshlrev_b32 v{M}, 6, v{vL}", f"v_add_u32 v{M}, s{S}, v{M}")
    A(f"v_and_b32 v{T+3}, 31, v{vL}", f"v_lshrrev_b32 v{T+4}, 5, v{vL}", f"v_sub_u32 v{T+5}, 3, v{T+3}", f"v_and_b32 v{T+5}, 3, v{T+5}")
    A(f"v_lshlrev_b32 v{T+6}, 3, v{T+4}", f"v_sub_u32 v{T+6}, v{T+6}, v{T+3}", f"v_sub_u32 v{T+6}, v{T+6}, v{T+5}", f"v_add_u32 v{T+6}, {2047 - 16*126}, v{T+6}")
    A(f"v_lshlrev_b32 v{T+6}, 1, v{T+6}", f"v_mul_u32_u24 v{T+5}, {CPY}, v{T+5}", f"v_add3_u32 v{M+1}, v{T+6}, v{T+5}, s{S}")
    A(f"v_mul_u32_u24 v{T+5}, 80, v{T+3}", f"v_lshl_add_u32 v{T+5}, v{T+4}, 4, v{T+5}", f"v_add_u32 v{T+5}, {W_U}, v{T+5}", f"v_add_u32 v{M+2}, s{S}, v{T+5}")
    A(f"v_mul_u32_u24 v{T+5}, 80, v{T+3}", f"v_lshl_add_u32 v{T+5}, v{T+4}, 3, v{T+5}", f"v_add_u32 v{T+5}, {W_U + 31*80}, v{T+5}", f"v_add_u32 v{M+3}, s{S}, v{T+5}")
    A(f"v_lshlrev_b32 v{T+5}, 8, v{T+3}", f"v_lshl_add_u32 v{T+5}, v{T+4}, 5, v{T+5}", f"s_lshl_b32 s{S+1}, s{sW}, 1", f"s_add_u32 s{S+1}, s{S+1}, {L_Y}", f"v_add_u32 v{M+4}, s{S+1}, v{T+5}")
    A(f"v_mov_b32 v{T+8}, 0", f"v_mov_b32 v{T+9}, 0", f"v_mov_b32 v{T+10}, 0", f"v_mov_b32 v{T+11}, 0")
    A(f"v_lshlrev_b32 v{T+5}, 4, v{vL}", f"v_add_u32 v{T+5}, s{S}, v{T+5}")
    for k in range(3):
        A(f"ds_write_b128 v{T+5}, {v(T+8,4)} offset:{W_U + k*1024}")
    A(f"v_and_b32 v{T+6}, 3, v{vL}", f"v_lshlrev_b32 v{T+6}, 4, v{T+6}", f"v_bfe_u32 v{T+7}, v{vL}, 2, 2", f"v_mul_u32_u24 v{T+7}, {CPY}, v{T+7}",
      f"v_add3_u32 v{T+6}, v{T+6}, v{T+7}, s{S}")
    A(f"ds_write_b128 v{T+6}, {v(T+8,4)} offset:4096")
    A(f"v_mov_b32 v{T+6}, s{S}", f"ds_write_b32 v{T+6}, v{T+8} offset:{W_TAB + 644*2}")
    A("s_waitcnt lgkmcnt(0)")

def ssm_task(A, R, vL, vTid, sW, sPtr, sWS, sCh0, sSrd, stflags=""):
    T = R.vT; S = R.sT; M = R.vMisc; P = R.vPar
    A("s_barrier")
    A(f"s_mul_i32 s{S}, s{sW}, {WSZ}", f"s_add_u32 s{S+1}, s{sCh0}, s{sW}")
    def mk(name, nbytes):
        o = sPtr + KA[name] // 4
        A(f"s_mov_b32 s{sSrd}, s{o}", f"s_and_b32 s{sSrd+1}, s{o+1}, 0xffff", f"s_mov_b32 s{sSrd+2}, {nbytes}", f"s_mov_b32 s{sSrd+3}, 0x00020000")
    mk('x', 2048*640*2)
    A(f"v_mul_u32_u24 v{T}, 1280, v{vTid}", f"s_lshl_b32 s{S+2}, s{sCh0}, 1")
    for k in range(8):
        A(f"s_add_u32 s{S+3}, s{S+2}, {k*256*1280}")
        A(f"buffer_load_dwordx2 {v(R.vAcc+2*k,2)}, v{T}, s[{sSrd}:{sSrd+3}], s{S+3} offen")
    A(f"v_lshrrev_b32 v{T+1}, 4, v{vL}", f"v_lshlrev_b32 v{T+1}, 6, v{T+1}", f"s_lshl_b32 s{S+2}, s{S+1}, 8")
    for ai, nm in enumerate(('Are', 'Aim', 'Bre', 'Bim', 'Cre', 'Cim')):
        mk(nm, 640*128*2)
        for q in range(4):
            A(f"buffer_load_dwordx4 {v(P+16*ai+4*q,4)}, v{T+1}, s[{sSrd}:{sSrd+3}], s{S+2} offen offset:{q*16}")
    A(f"v_mov_b32 v{T+2}, s{S+1}", f"v_lshlrev_b32 v{T+2}, 1, v{T+2}")
    mk('logdt', 1280)
    A(f"buffer_load_ushort v{M+5}, v{T+2}, s[{sSrd}:{sSrd+3}], 0 offen")
    mk('Dskip', 1280)
    A(f"buffer_load_ushort v{M+6}, v{T+2}, s[{sSrd}:{sSrd+3}], 0 offen")
    A(f"v_lshrrev_b32 v{T+3}, 5, v{vTid}", f"v_mul_u32_u24 v{T+3}, 80, v{T+3}", f"v_and_b32 v{T+4}, 31, v{vTid}", f"v_lshl_add_u32 v{T+3}, v{T+4}, 1, v{T+3}")
    A(f"v_add_u32 v{T+4}, {2*WSZ}, v{T+3}")
    A("s_waitcnt vmcnt(26)")
    for k in range(8):
        o = W_U + 80 * (31 + 8 * k)
        A(f"ds_write_b16 v{T+3}, v{R.vAcc+2*k} offset:{o}", f"ds_write_b16_d16_hi v{T+3}, v{R.vAcc+2*k} offset:{o + WSZ}")
        A(f"ds_write_b16 v{T+4}, v{R.vAcc+2*k+1} offset:{o}", f"ds_write_b16_d16_hi v{T+4}, v{R.vAcc+2*k+1} offset:{o + WSZ}")
    A("s_waitcnt vmcnt(0)")
    A(f"s_mov_b32 s{S+4}, {f32bits(math.log2(math.e)):#x}", f"s_mov_b32 s{S+5}, {f32bits(1.0/(2*math.pi)):#x}")
    A(f"v_lshlrev_b32 v{M+5}, 16, v{M+5}", f"v_mul_f32 v{M+5}, s{S+4}, v{M+5}", f"v_exp_f32 v{M+5}, v{M+5}", "s_nop 0",
      f"v_cvt_pk_bf16_f32 v{M+5}, v{M+5}, v{M+5}", f"v_lshlrev_b32 v{M+5}, 16, v{M+5}", f"v_lshlrev_b32 v{M+6}, 16, v{M+6}")
    for i in range(12):
        A(f"v_mov_b32 v{R.vD+i}, 0")
    dt = M + 5
    X = R.vAcc
    for t in range(32):
        w_, hi = t >> 1, t & 1
        def unp(dst, ai):
            src = P + 16 * ai + w_
            A(f"v_and_b32 v{dst}, 0xffff0000, v{src}" if hi else f"v_lshlrev_b32 v{dst}, 16, v{src}")
        for ai in range(6):
            unp(X + ai, ai)
        A(f"v_mul_f32 v{X}, v{dt}, v{X}", f"v_mul_f32 v{X+1}, v{dt}, v{X+1}", f"v_mul_f32 v{X+2}, v{dt}, v{X+2}", f"v_mul_f32 v{X+3}, v{dt}, v{X+3}")
        A(f"v_mul_f32 v{X}, s{S+4}, v{X}", f"v_mul_f32 v{X+1}, s{S+5}, v{X+1}")
        A(f"v_mul_f32 v{X+6}, v{X+4}, v{X+2}", f"v_mul_f32 v{X+7}, v{X+4}, v{X+3}")
        A(f"v_fma_f32 v{X+6}, -v{X+5}, v{X+3}, v{X+6}", f"v_fma_f32 v{X+7}, v{X+5}, v{X+2}, v{X+7}")
        for q in range(4):
            A(f"v_mul_f32 v{X+8+q}, v{X}, v{R.vOff+q}", f"v_mul_f32 v{X+12+q}, v{X+1}, v{R.vOff+q}")
        for q in range(4):
            A(f"v_exp_f32 v{X+8+q}, v{X+8+q}", f"v_fract_f32 v{X+12+q}, v{X+12+q}")
        for q in range(4):
            A(f"v_cos_f32 v{X+16+q}, v{X+12+q}", f"v_sin_f32 v{X+20+q}, v{X+12+q}")
        A("s_nop 0")
        for q in range(4):
            A(f"v_mul_f32 v{X+16+q}, v{X+16+q}, v{X+8+q}", f"v_mul_f32 v{X+20+q}, v{X+20+q}, v{X+8+q}")
        for q in range(3):
            A(f"v_mul_f32 v{X+24+q}, v{X+6}, v{X+16+q}", f"v_mul_f32 v{X+28+q}, v{X+6}, v{X+20+q}")
            A(f"v_fma_f32 v{X+24+q}, -v{X+7}, v{X+20+q}, v{X+24+q}", f"v_fma_f32 v{X+28+q}, -v{X+7}, v{X+16+q}, -v{X+28+q}")
        A("s_nop 1")
        for q in range(3):
            d = v(R.vD + 4*q, 4)
            A(f"v_mfma_f32_16x16x4_f32 {d}, v{X+24+q}, v{X+19}, {d}")
        for q in range(3):
            d = v(R.vD + 4*q, 4)
            A(f"v_mfma_f32_16x16x4_f32 {d}, v{X+28+q}, v{X+23}, {d}")
    A.nop(12)
    for i in range(0, 12, 2):
        A(f"v_cvt_pk_bf16_f32 v{T}, v{R.vD+i}, v{R.vD+i+1}")
        A(f"ds_write_b16 v{R.vTw+i}, v{T}", f"ds_write_b16_d16_hi v{R.vTw+i+1}, v{T}")
    A("s_waitcnt lgkmcnt(0)")
    E = P
    for e in range(35):
        A(f"ds_read_u16 v{E+e}, v{R.vIdx+e}")
    A("s_waitcnt lgkmcnt(0)")
    PK = P + 36
    for q in range(4):
        pk = PK + 16 * (q & 1)
        for w_ in range(16):
            A(f"v_lshl_or_b32 v{pk+w_}, v{E+q+2*w_+1}, 16, v{E+q+2*w_}")
        for c in range(4):
            A(f"ds_write_b128 v{M}, {v(pk+4*c,4)} offset:{q*CPY + c*16}")
        if q == 1:
            A("s_waitcnt lgkmcnt(0)")
    A("s_waitcnt lgkmcnt(0)", "s_barrier")
    for i in range(32):
        A(f"v_mov_b32 v{R.vAcc+i}, 0")
    steps = [(dl, hf) for dl in range(64) for hf in range(2)]
    def rd(idx):
        dl, hf = steps[idx]; b = idx & 1
        t = 2 * dl - hf
        o = 32 * (126 - t)
        A(f"ds_read_b64 {v(R.vFA+4*b,2)}, v{M+1} offset:{o}", f"ds_read_b64 {v(R.vFA+4*b+2,2)}, v{M+1} offset:{o+8}")
        A(f"ds_read_b128 {v(R.vFB+8*b,4)}, v{M+2} offset:{80*(32-dl+31)+32*hf}")
        if dl <= 31:
            A(f"ds_read_b128 {v(R.vFB+8*b+4,4)}, v{M+2} offset:{80*(31-dl)+32*hf}")
        return 4 if dl <= 31 else 3
    rd(0)
    for idx in range(len(steps)):
        n = rd(idx + 1) if idx + 1 < len(steps) else 0
        A(f"s_waitcnt lgkmcnt({n})")
        dl, hf = steps[idx]; b = idx & 1
        a1 = v(R.vAcc + 16, 16); a0 = v(R.vAcc, 16)
        A(f"v_mfma_f32_32x32x16_bf16 {a1}, {v(R.vFA+4*b,4)}, {v(R.vFB+8*b,4)}, {a1}")
        if dl <= 31:
            A(f"v_mfma_f32_32x32x16_bf16 {a0}, {v(R.vFA+4*b,4)}, {v(R.vFB+8*b+4,4)}, {a0}")
    for nt in range(2):
        for a_ in range(4):
            A(f"ds_read_b64 {v(P+8*nt+2*a_,2)}, v{M+3} offset:{nt*2560 + a_*16}")
    A.nop(8)
    A("s_waitcnt lgkmcnt(0)")
    for nt in range(2):
        for a_ in range(4):
            for h2 in range(2):
                u = P + 8*nt + 2*a_ + h2
                y0 = R.vAcc + 16*nt + 4*a_ + 2*h2
                A(f"v_lshlrev_b32 v{T}, 16, v{u}", f"v_and_b32 v{T+1}, 0xffff0000, v{u}")
                A(f"v_mul_f32 v{T}, v{T}, v{M+6}", f"v_mul_f32 v{T+1}, v{T+1}, v{M+6}")
                A(f"v_cvt_pk_bf16_f32 v{T+2}, v{T}, v{T+1}", f"v_cvt_pk_bf16_f32 v{T+3}, v{y0}, v{y0+1}")
                A(f"v_lshlrev_b32 v{T}, 16, v{T+2}", f"v_and_b32 v{T+1}, 0xffff0000, v{T+2}", f"v_lshlrev_b32 v{T+4}, 16, v{T+3}", f"v_and_b32 v{T+5}, 0xffff0000, v{T+3}")
                A(f"v_add_f32 v{T}, v{T}, v{T+4}", f"v_add_f32 v{T+1}, v{T+1}, v{T+5}", f"v_cvt_pk_bf16_f32 v{T+2}, v{T}, v{T+1}")
                o = (nt*1024 + 8*a_ + 2*h2) * 8
                A(f"ds_write_b16 v{M+4}, v{T+2} offset:{o}", f"ds_write_b16_d16_hi v{M+4}, v{T+2} offset:{o+8}")
    A("s_waitcnt lgkmcnt(0)", "s_barrier")
    A(f"v_lshlrev_b32 v{T}, 3, v{vTid}", f"v_mul_u32_u24 v{T+1}, 1280, v{vTid}")
    for k in range(8):
        A(f"ds_read_b64 {v(P+2*k,2)}, v{T} offset:{L_Y - 65536 + k*2048}" if L_Y + k*2048 > 65535 and False else f"ds_read_b64 {v(P+2*k,2)}, v{T+6} offset:{k*2048}") if False else None
    A(f"v_add_u32 v{T}, {L_Y}, v{T}")
    for k in range(8):
        A(f"ds_read_b64 {v(P+2*k,2)}, v{T} offset:{k*2048}")
    A(f"s_lshl_b32 s{S+2}, s{sCh0}, 1", f"s_add_u32 s{S+2}, s{S+2}, {WS_Y}")
    A("s_waitcnt lgkmcnt(0)")
    for k in range(8):
        A(f"s_add_u32 s{S+3}, s{S+2}, {k*256*1280}")
        A(f"buffer_store_dwordx2 {v(P+2*k,2)}, v{T+1}, s[{sWS}:{sWS+3}], s{S+3} offen {stflags}")

def gen_ssm(A, name):
    kernel_begin(A, name)
    R = SsmRegs(2, 16)
    vL = 1
    A("s_cmp_ge_u32 s2, 160", f"s_cbranch_scc1 {name}_exit")
    A("s_load_dwordx16 s[40:55], s[0:1], 0", "s_load_dwordx16 s[56:71], s[0:1], 64", "s_load_dwordx8 s[72:79], s[0:1], 128")
    A(f"v_lshrrev_b32 v{R.vT}, 6, v0", f"v_and_b32 v{vL}, 63, v0", "s_nop 0", f"v_readfirstlane_b32 s12, v{R.vT}")
    A("s_waitcnt lgkmcnt(0)")
    srd(A, 4, 40 + KA['ws'] // 4, WS_BYTES)
    ssm_setup(A, R, vL, 12)
    A("s_lshl_b32 s13, s2, 2")
    ssm_task(A, R, vL, 0, 12, 40, 4, 13, 8)
    A.label(f"{name}_exit")
    A("s_endpgm")
    assert R.vEnd <= 256, R.vEnd
    return kernel_desc(name, R.vEnd, 102)
```

```python
from asmgen import *
import gemm, chain, attn, ssm, outp, sys
gemm.NST = 2
body = Asm()
d0, nwg = chain.gen_init(body, "init_kernel")
d1 = gemm.gen_qkv(body, "qkv_kernel")
d2 = chain.gen_chain(body, "chain_kernel", timing=False)
d3 = attn.gen_attn(body, "attn_kernel")
d4 = ssm.gen_ssm(body, "ssm_kernel")
d5, nt = outp.gen_outproj(body, "outp_kernel")
d6 = outp.gen_combine(body, "comb_kernel")
out = f"""; @launch kernel=init_kernel grid=({nwg},1,1) block=(256,1,1) lds=0
; @launch kernel=qkv_kernel grid=({16*96},1,1) block=(256,1,1) lds={gemm.NST*gemm.STG}
; @launch kernel=ssm_kernel grid=(160,1,1) block=(256,1,1) lds={ssm.LDS_BYTES}
; @launch kernel=chain_kernel grid=(256,1,1) block=(256,1,1) lds=102400
; @launch kernel=attn_kernel grid=(512,1,1) block=(256,1,1) lds=0
; @launch kernel=outp_kernel grid=({nt},1,1) block=(256,1,1) lds={gemm.NST*gemm.STG}
; @launch kernel=comb_kernel grid=(512,1,1) block=(256,1,1) lds=0
.amdgcn_target "amdgcn-amd-amdhsa--gfx950"
.text
""" + body.text() + d0 + d1 + d2 + d3 + d4 + d5 + d6
open(sys.argv[1] if len(sys.argv) > 1 else "seq.s", "w").write(out)
```
